```python
import torch

def _softmax(x, axis=-1):
    return torch.softmax(x, dim=axis)

def _gelu(x):
    return torch.nn.functional.gelu(x, approximate='tanh')

def _silu(x):
    return torch.nn.functional.silu(x)

def _sigmoid(x):
    return torch.sigmoid(x)

def _layernorm(x, axis=-1, eps=1e-05):
    m = x.mean(dim=axis, keepdim=True)
    v = x.var(dim=axis, keepdim=True, unbiased=False)
    return (x - m) / torch.sqrt(v + eps)

def _scatter_add(tgt, idx, src, axis=0):
    return tgt.clone().index_add_(axis, idx, src)

def _segment_sum(src, seg, n):
    out = torch.zeros((n,) + src.shape[1:], dtype=src.dtype)
    return out.index_add_(0, seg, src)

def _pad(x, pw):
    flat = tuple((v for pair in reversed(pw) for v in pair))
    return torch.nn.functional.pad(x, flat)
kernel_name = 'concat_heads__memory_aug_recurrent_mem_tr__compressed_kv_cla__prompt'

def setup_inputs():

    _w = lambda a: (lambda t: t.to(torch.bfloat16) if t.is_floating_point() else t)(torch.as_tensor(a))

    def _A_setup():
        B, S, Dm = (1, 2048, 448)
        H, Dh = (16, 256)
        M, seg = (8, 32)
        seg = min(seg, S)
        S = S // seg * seg
        return {'x': _w((lambda *s: torch.randn(*s, dtype=torch.bfloat16) * 0.05)(B, S, Dm)), 'mem0': _w((lambda *s: torch.randn(*s, dtype=torch.bfloat16) * 0.4)(B, M, Dm)), 'Wq': _w((lambda *s: torch.randn(*s, dtype=torch.bfloat16) * 6.4)(Dm, H, Dh) * Dm ** (-0.5)), 'Wk': _w((lambda *s: torch.randn(*s, dtype=torch.bfloat16) * 6.4)(Dm, H, Dh) * Dm ** (-0.5)), 'Wv': _w((lambda *s: torch.randn(*s, dtype=torch.bfloat16) * 0.4)(Dm, H, Dh) * Dm ** (-0.5)), 'Wo': _w((lambda *s: torch.randn(*s, dtype=torch.bfloat16) * 0.4)(H, Dh, Dm) * (H * Dh) ** (-0.5)), 'seg_len': seg}
    _A_in = _A_setup()

    def _B_setup():
        B, H, Sq, Sk, D, M = (1, 16, 2048, 2048, 256, 448)
        Dc = 4 * D
        return {'x': _w((lambda *s: torch.randn(*s, dtype=torch.bfloat16) * 1.6)(B, Sq, M)), 'c_kv': _w((lambda *s: torch.randn(*s, dtype=torch.bfloat16) * 0.2)(B, Sk, Dc)), 'w_q': _w((lambda *s: torch.randn(*s, dtype=torch.bfloat16) * 3.2)(M, H, D) * M ** (-0.5)), 'w_uk': _w((lambda *s: torch.randn(*s, dtype=torch.bfloat16) * 3.2)(Dc, H, D) * Dc ** (-0.5)), 'w_uv': _w((lambda *s: torch.randn(*s, dtype=torch.bfloat16) * 0.2)(Dc, H, D) * Dc ** (-0.5)), 'w_o': _w((lambda *s: torch.randn(*s, dtype=torch.bfloat16) * 0.2)(H, D, M) * (H * D) ** (-0.5))}
    _B_in = _B_setup()
    return {'A_x': _A_in['x'], 'A_mem0': _A_in['mem0'], 'A_Wq': _A_in['Wq'], 'A_Wk': _A_in['Wk'], 'A_Wv': _A_in['Wv'], 'A_Wo': _A_in['Wo'], 'A_seg_len': _A_in['seg_len'], 'B_x': _B_in['x'], 'B_c_kv': _B_in['c_kv'], 'B_w_q': _B_in['w_q'], 'B_w_uk': _B_in['w_uk'], 'B_w_uv': _B_in['w_uv'], 'B_w_o': _B_in['w_o']}

def reference(A_x, A_mem0, A_Wq, A_Wk, A_Wv, A_Wo, A_seg_len, B_x, B_c_kv, B_w_q, B_w_uk, B_w_uv, B_w_o):

    def _A_ref(x, mem0, Wq, Wk, Wv, Wo, seg_len):
        B, S, Dm = x.shape
        H, Dh = (Wq.shape[1], Wq.shape[2])
        M = mem0.shape[1]
        scale = Dh ** (-0.5)
        n_seg = S // seg_len
        L = M + seg_len
        idx = torch.arange(L)
        mask = (idx[:, None] < M) | (idx[:, None] >= idx[None, :])
        mem = mem0
        outs = []
        for s in range(n_seg):
            xs = x[:, s * seg_len:(s + 1) * seg_len, :].clone()
            h = torch.concatenate([mem, xs], axis=1)
            q = torch.einsum('btd,dhe->bhte', h, Wq)
            k = torch.einsum('btd,dhe->bhte', h, Wk)
            v = torch.einsum('btd,dhe->bhte', h, Wv)
            scores = torch.einsum('bhqe,bhke->bhqk', q, k) * scale
            scores = torch.where(mask[None, None], scores, -1000000000.0)
            p = _softmax(scores, axis=-1)
            o = torch.einsum('bhqk,bhke->bhqe', p, v)
            o = torch.einsum('bhte,hed->btd', o, Wo)
            mem = o[:, :M, :].clone()
            outs.append(o[:, M:, :])
        return torch.concatenate(outs, axis=1)

    def _B_ref(x, c_kv, w_q, w_uk, w_uv, w_o):
        B, Sq, M = (x.shape[0], x.shape[1], x.shape[2])
        Sk = c_kv.shape[1]
        H, D = (w_q.shape[1], w_q.shape[2])
        q = torch.einsum('bqm,mhd->bhqd', x, w_q)
        k = torch.einsum('bkc,chd->bhkd', c_kv, w_uk)
        v = torch.einsum('bkc,chd->bhkd', c_kv, w_uv)
        scores = torch.einsum('bhqd,bhkd->bhqk', q, k) * D ** (-0.5)
        off = Sk - Sq
        qi = torch.arange(Sq)[:, None]
        kj = torch.arange(Sk)[None, :]
        cmask = kj <= qi + off
        scores = torch.where(cmask[None, None], scores, -1000000000.0)
        p = _softmax(scores, axis=-1)
        ctx = torch.einsum('bhqk,bhkd->bhqd', p, v)
        return torch.einsum('bhqd,hdm->bqm', ctx, w_o)
    a = _A_ref(A_x, A_mem0, A_Wq, A_Wk, A_Wv, A_Wo, A_seg_len)
    b = _B_ref(B_x, B_c_kv, B_w_q, B_w_uk, B_w_uv, B_w_o)
    return torch.concatenate([a, b], axis=-1)
```

```python
_UID=[0]
class Asm:
    def __init__(self):
        self.lines = []
        self.uid = 0
    def __call__(self, s):
        for ln in s.strip('\n').split('\n'):
            ln = ln.strip()
            if not ln: continue
            if ln.endswith(':'):
                self.lines.append(ln)
            else:
                self.lines.append('    ' + ln)
    def label(self, base='L'):
        _UID[0] += 1
        return f"{base}_{_UID[0]}"
    def text(self):
        return '\n'.join(self.lines) + '\n'

def vr(base, n=1):
    return f'v{base}' if n == 1 else f'v[{base}:{base+n-1}]'
def ar(base, n=1):
    return f'a{base}' if n == 1 else f'a[{base}:{base+n-1}]'
def sr(base, n=1):
    return f's{base}' if n == 1 else f's[{base}:{base+n-1}]'

KPFX = 'concat_heads__memory_aug_recurrent_mem_tr__compressed_kv_cla__prompt'

def kernel_header(a, name):
    a(f'.globl {name}')
    a('.p2align 8')
    a(f'.type {name},@function')
    a(f'{name}:')

def kernel_desc(name, vgpr, sgpr=102, accum=None):
    if accum is None:
        accum = (min(vgpr,256) + 3) // 4 * 4
    return f'''.amdhsa_kernel {name}
  .amdhsa_next_free_vgpr {vgpr}
  .amdhsa_next_free_sgpr {sgpr}
  .amdhsa_accum_offset {accum}
  .amdhsa_group_segment_fixed_size 0
  .amdhsa_kernarg_size 128
  .amdhsa_user_sgpr_count 2
  .amdhsa_user_sgpr_kernarg_segment_ptr 1
  .amdhsa_system_sgpr_workgroup_id_x 1
.end_amdhsa_kernel
'''
```

```python
from asmlib import *
from chainlib import *

RSV = 528
def emit_xattn(a):
    a(f'''
    v_and_b32 v1, 63, v0
    v_lshrrev_b32 v2, 6, v0
    s_nop 1
    v_readfirstlane_b32 s3, v2
    v_and_b32 v3, 15, v1
    v_lshrrev_b32 v4, 4, v1
    s_lshl_b32 s4, s2, 2
    s_add_u32 s4, s4, s3
    s_lshr_b32 s5, s4, 4                 ; seg
    s_and_b32 s6, s4, 15                 ; head
    s_lshl_b32 s7, s6, 9                 ; h*512
    v_xor_b32 v5, 16, v1
    v_lshlrev_b32 v5, 2, v5
    v_xor_b32 v6, 32, v1
    v_lshlrev_b32 v6, 2, v6
    v_lshlrev_b32 v7, 13, v3
    v_lshlrev_b32 v8, 4, v4
    v_add_u32 v7, v7, v8
    s_lshl_b32 s8, s5, 18                ; 32s*8192
    s_add_u32 s8, s8, s7
    s_lshl_b32 s9, s5, 16                ; 8s*8192
    s_add_u32 s9, s9, s7
    s_add_u32 s9, s9, {WS_KM}
    v_lshlrev_b32 v9, 13, v3
    v_add_u32 v10, s9, v9
    s_add_u32 s10, s8, {WS_KX}
    v_add_u32 v11, s10, v9
    v_subrev_u32 v11, {8*8192}, v11
    v_cmp_gt_u32 vcc, 8, v3
    s_nop 1
    v_cndmask_b32 v10, v11, v10, vcc
    v_add_u32 v10, v10, v8
    v_add_u32 v11, s10, v9
    v_add_u32 v11, {8*8192}, v11
    v_add_u32 v11, v11, v8
    v_and_b32 v12, 7, v3
    v_lshlrev_b32 v12, 13, v12
    v_add_u32 v12, s10, v12
    v_add_u32 v12, {24*8192}, v12
    v_add_u32 v12, v12, v8
    ''')
    Q = 64
    for ct in range(2):
        a(f's_add_u32 s11, s8, {WS_QX + ct*16*8192}')
        for ks in range(8):
            a(f'buffer_load_dwordx4 v[{Q+(ct*8+ks)*4}:{Q+(ct*8+ks)*4+3}], v7, s[48:51], s11 offen offset:{ks*64}')
    a(f'''
    s_mul_i32 s12, s3, {48*RSV}
    v_lshrrev_b32 v13, 5, v1             ; 0/1
    v_and_b32 v14, 31, v1
    v_lshlrev_b32 v14, 4, v14            ; cc*16
    v_mul_u32_u24 v15, {RSV}, v13
    v_add_u32 v15, v15, v14
    v_add_u32 v15, s12, v15
    v_lshlrev_b32 v16, 13, v13
    v_add_u32 v16, v16, v14
    s_lshl_b32 s13, s5, 16
    s_add_u32 s13, s13, s7
    s_add_u32 s13, s13, {WS_VM}
    s_add_u32 s14, s8, {WS_VX}
    ''')
    for blk in range(5):
        for uu in range(4):
            u = blk*4+uu
            if u < 4: a(f's_add_u32 s15, s13, {2*u*8192}')
            else: a(f's_add_u32 s15, s14, {(2*u-8)*8192}')
            a(f'buffer_load_dwordx4 v[{32+4*uu}:{35+4*uu}], v16, s[48:51], s15 offen')
        a('s_waitcnt vmcnt(0)')
        for uu in range(4):
            u = blk*4+uu
            a(f'ds_write_b128 v15, v[{32+4*uu}:{35+4*uu}] offset:{2*u*RSV}')
    for r in range(4): a(f'v_mov_b32 v{32+r}, 0')
    for u in range(20, 24):
        a(f'ds_write_b128 v15, v[32:35] offset:{2*u*RSV}')
    S = 128
    for r in range(24): a(f'v_mov_b32 v{S+r}, 0')
    KF = 32
    for ks in range(8):
        for mt in range(3):
            a(f'buffer_load_dwordx4 v[{KF+4*mt}:{KF+4*mt+3}], v{10+mt}, s[48:51], 0 offen offset:{ks*64}')
        a('s_waitcnt vmcnt(0)')
        for mt in range(3):
            for ct in range(2):
                acc = S + (mt*2+ct)*4
                a(f'v_mfma_f32_16x16x32_bf16 v[{acc}:{acc+3}], v[{KF+4*mt}:{KF+4*mt+3}], v[{Q+(ct*8+ks)*4}:{Q+(ct*8+ks)*4+3}], v[{acc}:{acc+3}]')
    a('s_nop 7'); a('s_nop 1')
    a('s_mov_b32 s15, 0xff800000')
    a('v_lshlrev_b32 v17, 2, v4')
    for ct in range(2):
        for mt in range(3):
            acc = S + (mt*2+ct)*4
            for r in range(0,4,2):
                a(f'v_cvt_pk_bf16_f32 v32, v{acc+r}, v{acc+r+1}')
                a(f'v_lshlrev_b32 v{acc+r}, 16, v32')
                a(f'v_and_b32 v{acc+r+1}, 0xffff0000, v32')
            for r in range(4):
                a(f'v_mul_f32 v{acc+r}, 0x3d800000, v{acc+r}')
                a(f'v_add_u32 v33, {16*mt + r - 8 - 16*ct}, v17')
                a(f'v_cmp_le_i32 vcc, v33, v3')
                a('s_nop 1')
                a(f'v_cndmask_b32 v{acc+r}, s15, v{acc+r}, vcc' if False else f'v_mov_b32 v34, s15\nv_cndmask_b32 v{acc+r}, v34, v{acc+r}, vcc')
        regs = [S + (mt*2+ct)*4 + r for mt in range(3) for r in range(4)]
        a(f'v_max3_f32 v35, v{regs[0]}, v{regs[1]}, v{regs[2]}')
        for k in range(3,11,2): a(f'v_max3_f32 v35, v35, v{regs[k]}, v{regs[k+1]}')
        a(f'v_max_f32 v35, v35, v{regs[11]}')
        a('ds_bpermute_b32 v36, v5, v35'); a('s_waitcnt lgkmcnt(0)'); a('v_max_f32 v35, v35, v36')
        a('ds_bpermute_b32 v36, v6, v35'); a('s_waitcnt lgkmcnt(0)'); a('v_max_f32 v35, v35, v36')
        a('s_mov_b32 s16, 0x3fb8aa3b')
        for rg in regs:
            a(f'v_sub_f32 v{rg}, v{rg}, v35'); a(f'v_mul_f32 v{rg}, s16, v{rg}'); a(f'v_exp_f32 v{rg}, v{rg}')
        a('s_nop 0')
        a(f'v_add_f32 v36, v{regs[0]}, v{regs[1]}')
        for rg in regs[2:]: a(f'v_add_f32 v36, v36, v{rg}')
        a('ds_bpermute_b32 v37, v5, v36'); a('s_waitcnt lgkmcnt(0)'); a('v_add_f32 v36, v36, v37')
        a('ds_bpermute_b32 v37, v6, v36'); a('s_waitcnt lgkmcnt(0)'); a('v_add_f32 v36, v36, v37')
        a('v_rcp_f32 v36, v36'); a('s_nop 0')
        for rg in regs: a(f'v_mul_f32 v{rg}, v{rg}, v36')
        PO = 152 + ct*8
        for mt in range(3):
            acc = S + (mt*2+ct)*4
            o = PO + (mt//2)*4 + (mt%2)*2
            a(f'v_cvt_pk_bf16_f32 v{o}, v{acc}, v{acc+1}')
            a(f'v_cvt_pk_bf16_f32 v{o+1}, v{acc+2}, v{acc+3}')
        a(f'v_mov_b32 v{PO+6}, 0'); a(f'v_mov_b32 v{PO+7}, 0')
    a(f'''
    v_lshrrev_b32 v18, 2, v3
    v_add_u32 v18, v18, v17
    v_mul_u32_u24 v18, {RSV}, v18
    v_and_b32 v19, 3, v3
    v_lshlrev_b32 v19, 3, v19
    v_add_u32 v18, v18, v19
    v_add_u32 v18, s12, v18
    v_lshlrev_b32 v19, 13, v3
    v_lshlrev_b32 v20, 3, v4
    v_add_u32 v19, v19, v20
    s_add_u32 s17, s8, {WS_OX}
    v_mov_b32 v46, 0
    v_mov_b32 v47, 0
    s_waitcnt lgkmcnt(0)
    ''')
    for met in range(16):
        a(f'ds_read_b64_tr_b16 v[40:41], v18 offset:{met*32}')
        a(f'ds_read_b64_tr_b16 v[42:43], v18 offset:{16*RSV + met*32}')
        a(f'ds_read_b64_tr_b16 v[44:45], v18 offset:{32*RSV + met*32}')
        for r in range(8): a(f'v_mov_b32 v{48+r}, 0')
        a('s_waitcnt lgkmcnt(0)')
        for ct in range(2):
            a(f'v_mfma_f32_16x16x32_bf16 v[{48+4*ct}:{51+4*ct}], v[40:43], v[{152+ct*8}:{155+ct*8}], v[{48+4*ct}:{51+4*ct}]')
            a(f'v_mfma_f32_16x16x32_bf16 v[{48+4*ct}:{51+4*ct}], v[44:47], v[{156+ct*8}:{159+ct*8}], v[{48+4*ct}:{51+4*ct}]')
        a('s_nop 7'); a('s_nop 1')
        for ct in range(2):
            a(f'v_cvt_pk_bf16_f32 v56, v{48+4*ct}, v{49+4*ct}')
            a(f'v_cvt_pk_bf16_f32 v57, v{50+4*ct}, v{51+4*ct}')
            a(f's_add_u32 s18, s17, {ct*16*8192}')
            a(f'buffer_store_dwordx2 v[56:57], v19, s[48:51], s18 offen offset:{met*32}')
            a('s_nop 0')

RSK = 528
KVBUF = 2 * 32 * RSK
def emit_flash(a):
    a(f'''
    v_and_b32 v1, 63, v0
    v_lshrrev_b32 v2, 6, v0
    s_nop 1
    v_readfirstlane_b32 s3, v2
    v_and_b32 v3, 15, v1
    v_lshrrev_b32 v4, 4, v1
    s_lshr_b32 s4, s2, 4
    s_sub_u32 s4, 15, s4                 ; qt
    s_and_b32 s6, s2, 15
    s_lshl_b32 s7, s6, 9                 ; h*512
    v_xor_b32 v5, 16, v1
    v_lshlrev_b32 v5, 2, v5
    v_xor_b32 v6, 32, v1
    v_lshlrev_b32 v6, 2, v6
    v_lshlrev_b32 v7, 13, v3
    v_lshlrev_b32 v8, 4, v4
    v_add_u32 v7, v7, v8                 ; i*8192 + g*16
    s_lshl_b32 s8, s4, 20                ; qt*128*8192
    s_lshl_b32 s9, s3, 18                ; w*32*8192
    s_add_u32 s8, s8, s9
    s_add_u32 s8, s8, s7
    v_lshrrev_b32 v9, 5, v0
    v_and_b32 v10, 31, v0
    v_lshlrev_b32 v10, 4, v10
    v_lshlrev_b32 v11, 13, v9
    v_add_u32 v11, v11, v10
    v_mul_u32_u24 v12, {RSK}, v9
    v_add_u32 v12, v12, v10
    v_mul_u32_u24 v13, {RSK}, v3
    v_add_u32 v13, v13, v8
    v_lshlrev_b32 v17, 2, v4
    v_lshrrev_b32 v14, 2, v3
    v_add_u32 v14, v14, v17
    v_mul_u32_u24 v14, {RSK}, v14
    v_and_b32 v15, 3, v3
    v_lshlrev_b32 v15, 3, v15
    v_add_u32 v14, v14, v15
    v_add_u32 v14, {32*RSK}, v14
    s_lshl_b32 s10, s4, 7
    s_lshl_b32 s11, s3, 5
    s_add_u32 s10, s10, s11
    v_add_u32 v15, s10, v3
    v_sub_u32 v15, v15, v17
    s_add_u32 s12, s4, 1
    s_lshl_b32 s12, s12, 2               ; nkt
    s_lshl_b32 s13, s4, 2
    ''')
    for ct in range(2):
        a(f's_add_u32 s14, s8, {WS_BQ + ct*16*8192}')
        for ks in range(8):
            a(f'buffer_load_dwordx4 v[{64+ks*4}:{64+ks*4+3}], v7, s[48:51], s14 offen offset:{ks*64}')
        a('s_waitcnt vmcnt(0)')
        for r in range(32):
            a(f'v_accvgpr_write_b32 a{ct*32+r}, v{64+r}')
    for r in range(128): a(f'v_mov_b32 v{128+r}, 0')
    a('s_mov_b32 s15, 0xff800000')
    a('v_mov_b32 v120, s15'); a('v_mov_b32 v121, s15'); a('v_mov_b32 v122, 0'); a('v_mov_b32 v123, 0')
    STG = 64
    def issue(skt):
        a(f's_lshl_b32 s16, {skt}, 18')
        a('s_add_u32 s16, s16, s7')
        for u in range(4):
            a(f's_add_u32 s17, s16, {WS_BK + u*8*8192}')
            a(f'buffer_load_dwordx4 v[{STG+4*u}:{STG+4*u+3}], v11, s[48:51], s17 offen')
        for u in range(4):
            a(f's_add_u32 s17, s16, {WS_BV + u*8*8192}')
            a(f'buffer_load_dwordx4 v[{STG+16+4*u}:{STG+16+4*u+3}], v11, s[48:51], s17 offen')
    def wr(buf):
        for u in range(4):
            a(f'ds_write_b128 v12, v[{STG+4*u}:{STG+4*u+3}] offset:{buf + u*8*RSK}')
        for u in range(4):
            a(f'ds_write_b128 v12, v[{STG+16+4*u}:{STG+16+4*u+3}] offset:{buf + 32*RSK + u*8*RSK}')
    a('s_mov_b32 s18, 0')
    issue('s18')
    a('s_waitcnt vmcnt(0)')
    wr(0)
    a('s_waitcnt lgkmcnt(0)')
    a('s_barrier')
    loop = a.label('fl'); done = a.label('fdone')
    a(f'{loop}:')
    S = 96
    for par in range(2):
        buf = par*KVBUF; nbuf = (1-par)*KVBUF
        nl = a.label('fnl')
        a('s_add_u32 s19, s18, 1')
        a('s_cmp_ge_u32 s19, s12')
        a(f's_cbranch_scc1 {nl}')
        issue('s19')
        a(f'{nl}:')
        for r in range(16): a(f'v_mov_b32 v{S+r}, 0')
        for ks in range(8):
            for mt in range(2):
                a(f'ds_read_b128 v[{32+4*mt}:{35+4*mt}], v13 offset:{buf + mt*16*RSK + ks*64}')
            a('s_waitcnt lgkmcnt(0)')
            for mt in range(2):
                for ct in range(2):
                    acc = S + (mt*2+ct)*4
                    a(f'v_mfma_f32_16x16x32_bf16 v[{acc}:{acc+3}], v[{32+4*mt}:{35+4*mt}], a[{ct*32+ks*4}:{ct*32+ks*4+3}], v[{acc}:{acc+3}]')
        a('s_nop 7'); a('s_nop 1')
        a('s_mov_b32 s20, 0x3db8aa3b')
        for r in range(0,16,2):
            a(f'v_cvt_pk_bf16_f32 v32, v{S+r}, v{S+r+1}')
            a(f'v_lshlrev_b32 v{S+r}, 16, v32')
            a(f'v_and_b32 v{S+r+1}, 0xffff0000, v32')
        for r in range(16): a(f'v_mul_f32 v{S+r}, s20, v{S+r}')
        nm = a.label('nomask')
        a('s_cmp_lt_u32 s18, s13')
        a(f's_cbranch_scc1 {nm}')
        a('s_lshl_b32 s21, s18, 5')
        a('v_mov_b32 v34, s15')
        for mt in range(2):
            for ct in range(2):
                for r in range(4):
                    a(f's_add_u32 s22, s21, {16*mt + r - 16*ct}')
                    a(f'v_cmp_le_i32 vcc, s22, v15')
                    a('s_nop 1')
                    acc = S + (mt*2+ct)*4 + r
                    a(f'v_cndmask_b32 v{acc}, v34, v{acc}, vcc')
        a(f'{nm}:')
        for ct in range(2):
            regs = [S + (mt*2+ct)*4 + r for mt in range(2) for r in range(4)]
            a(f'v_max3_f32 v35, v{regs[0]}, v{regs[1]}, v{regs[2]}')
            a(f'v_max3_f32 v35, v35, v{regs[3]}, v{regs[4]}')
            a(f'v_max3_f32 v35, v35, v{regs[5]}, v{regs[6]}')
            a(f'v_max_f32 v35, v35, v{regs[7]}')
            a('ds_bpermute_b32 v36, v5, v35'); a('s_waitcnt lgkmcnt(0)'); a('v_max_f32 v35, v35, v36')
            a('ds_bpermute_b32 v36, v6, v35'); a('s_waitcnt lgkmcnt(0)'); a('v_max_f32 v35, v35, v36')
            a(f'v_max_f32 v35, v35, v{120+ct}')
            a(f'v_sub_f32 v36, v{120+ct}, v35')
            a('v_exp_f32 v36, v36')
            a(f'v_mov_b32 v{120+ct}, v35')
            for rg in regs:
                a(f'v_sub_f32 v{rg}, v{rg}, v35'); a(f'v_exp_f32 v{rg}, v{rg}')
            a('s_nop 0')
            a(f'v_mul_f32 v{122+ct}, v{122+ct}, v36')
            for rg in regs: a(f'v_add_f32 v{122+ct}, v{122+ct}, v{rg}')
            for met in range(16):
                for r in range(4):
                    o = 128 + (met*2+ct)*4 + r
                    a(f'v_mul_f32 v{o}, v{o}, v36')
            for mt in range(2):
                a(f'v_cvt_pk_bf16_f32 v{112+ct*4+mt*2}, v{regs[mt*4]}, v{regs[mt*4+1]}')
                a(f'v_cvt_pk_bf16_f32 v{113+ct*4+mt*2}, v{regs[mt*4+2]}, v{regs[mt*4+3]}')
        for met in range(16):
            a(f'ds_read_b64_tr_b16 v[40:41], v14 offset:{buf + met*32}')
            a(f'ds_read_b64_tr_b16 v[42:43], v14 offset:{buf + 16*RSK + met*32}')
            a('s_waitcnt lgkmcnt(0)')
            for ct in range(2):
                o = 128 + (met*2+ct)*4
                a(f'v_mfma_f32_16x16x32_bf16 v[{o}:{o+3}], v[40:43], v[{112+ct*4}:{115+ct*4}], v[{o}:{o+3}]')
        a('s_waitcnt vmcnt(0)')
        wr(nbuf)
        a('s_waitcnt lgkmcnt(0)')
        a('s_barrier')
        a('s_add_u32 s18, s18, 1')
        a('s_cmp_ge_u32 s18, s12')
        a(f's_cbranch_scc1 {done}')
    a(f's_branch {loop}')
    a(f'{done}:')
    a('s_nop 7'); a('s_nop 1')
    a(f'''
    v_lshlrev_b32 v19, 13, v3
    v_lshlrev_b32 v20, 3, v4
    v_add_u32 v19, v19, v20
    ''')
    for ct in range(2):
        a(f'ds_bpermute_b32 v36, v5, v{122+ct}'); a('s_waitcnt lgkmcnt(0)'); a(f'v_add_f32 v{122+ct}, v{122+ct}, v36')
        a(f'ds_bpermute_b32 v36, v6, v{122+ct}'); a('s_waitcnt lgkmcnt(0)'); a(f'v_add_f32 v{122+ct}, v{122+ct}, v36')
        a(f'v_rcp_f32 v{122+ct}, v{122+ct}')
        a('s_nop 0')
        a(f's_add_u32 s14, s8, {WS_CTX + ct*16*8192}')
        for met in range(16):
            o = 128 + (met*2+ct)*4
            for r in range(4): a(f'v_mul_f32 v{o+r}, v{o+r}, v{122+ct}')
            a(f'v_cvt_pk_bf16_f32 v56, v{o}, v{o+1}')
            a(f'v_cvt_pk_bf16_f32 v57, v{o+2}, v{o+3}')
            a(f'buffer_store_dwordx2 v[56:57], v19, s[48:51], s14 offen offset:{met*32}')
            a('s_nop 0')
```

```python
from asmlib import *

M = 1 << 20
DEBUG = False
WS_QX=0; WS_KX=16*M; WS_VX=32*M; WS_BQ=48*M; WS_BK=64*M; WS_BV=80*M; WS_OX=96*M; WS_CTX=112*M
WS_WVO=128*M; WS_MEM=136*M; WS_KM=137*M; WS_VM=141*M; WS_MB=146*M; WS_PB=148*M
MB_STRIDE=16384; PB_STRIDE=32768
RSM = 912
LDS_WF = 0
LDS_MEM = 114688
LDS_RED = LDS_MEM + 48*RSM
LDS_CHAIN = 163840

def P(i): return 16+2*i

def bperm_xor(a, dst, src, vaddr):
    a(f'ds_bpermute_b32 {dst}, {vaddr}, {src}')

def emit_chain(a, s_first, s_last):
    LA = a.label('roleB')
    a(f'''
    v_and_b32 v1, 63, v0                 ; lane
    v_lshrrev_b32 v2, 6, v0
    s_nop 1
    v_readfirstlane_b32 s3, v2
    v_and_b32 v3, 15, v1                 ; i
    v_lshrrev_b32 v4, 4, v1              ; g
    s_mov_b32 s48, s{P(15)}
    s_mov_b32 s49, s{P(15)+1}
    s_mov_b32 s50, 0x7fffffff
    s_mov_b32 s51, 0x00020000
    v_xor_b32 v5, 16, v1
    v_lshlrev_b32 v5, 2, v5
    v_xor_b32 v6, 32, v1
    v_lshlrev_b32 v6, 2, v6
    v_lshrrev_b32 v7, 3, v1
    v_mul_u32_u24 v7, {RSM}, v7
    v_and_b32 v8, 7, v1
    v_lshlrev_b32 v8, 2, v8
    v_add_u32 v7, v7, v8
    s_lshl_b32 s4, s3, 5
    s_add_u32 s4, s4, {LDS_MEM}
    v_add_u32 v7, s4, v7
    v_lshlrev_b32 v8, 3, v0
    s_cmp_ge_u32 s2, 16
    s_cbranch_scc1 {LA}
    ''')
    emit_roleA(a, s_first, s_last)
    a('s_branch L_chain_end')
    a(f'{LA}:')
    emit_roleB(a, s_first, s_last)
    a('L_chain_end:')

def emit_poll_mem(a, sStep):
    lp = a.label('pollm')
    a(f's_mul_i32 s62, {sStep}, {MB_STRIDE}')
    a(f's_add_u32 s62, s62, {WS_MB}')
    a(f's_add_u32 s63, {sStep}, 1')
    a(f'{lp}:')
    for u in range(7):
        a(f's_add_u32 s61, s62, {u*2048}')
        a(f'buffer_load_dwordx2 v[{32+2*u}:{33+2*u}], v8, s[48:51], s61 offen sc1')
    a('s_waitcnt vmcnt(0)')
    a('v_xor_b32 v46, s63, v33')
    for u in range(1,7):
        a(f'v_xor_b32 v47, s63, v{33+2*u}')
        a('v_or_b32 v46, v46, v47')
    a('v_cmp_ne_u32 vcc, 0, v46')
    a(f's_cbranch_vccnz {lp}')
    for u in range(7):
        a(f'ds_write_b32 v7, v{32+2*u} offset:{u*128}')
    a('s_waitcnt lgkmcnt(0)')
    a('s_barrier')

def emit_roleA(a, s_first, s_last):
    STG = 26
    a(f'''
    v_lshrrev_b32 v9, 3, v1
    v_lshlrev_b32 v10, 13, v9            ; row*8192
    v_and_b32 v11, 7, v1
    v_lshlrev_b32 v11, 4, v11
    v_add_u32 v10, v10, v11
    v_mul_u32_u24 v12, 144, v9
    v_add_u32 v12, v12, v11
    s_mul_i32 s4, s3, 4608
    s_add_u32 s4, s4, {LDS_MEM}
    v_add_u32 v12, s4, v12
    v_lshrrev_b32 v13, 2, v3
    v_lshlrev_b32 v14, 3, v4
    v_add_u32 v13, v13, v14
    v_mul_u32_u24 v13, 144, v13
    v_and_b32 v14, 3, v3
    v_lshlrev_b32 v14, 3, v14
    v_add_u32 v13, v13, v14
    v_add_u32 v13, s4, v13
    v_lshlrev_b32 v14, 4, v1
    s_mul_i32 s5, s3, 28672
    v_add_u32 v14, s5, v14
    s_lshl_b32 s6, s2, 9
    s_lshl_b32 s7, s3, 7
    s_add_u32 s6, s6, s7
    ''')
    for mat in range(2):
        pi = 2 if mat == 0 else 3
        a(f'''
        s_mov_b32 s52, s{P(pi)}
        s_mov_b32 s53, s{P(pi)+1}
        s_mov_b32 s54, 0x7fffffff
        s_mov_b32 s55, 0x00020000
        ''')
        for ks in range(14):
            a(f's_add_u32 s7, s6, {ks*32*8192}')
            for u in range(4):
                a(f'buffer_load_dwordx4 v[{STG+4*u}:{STG+4*u+3}], v10, s[52:55], s7 offen offset:0' if u==0 else
                  f's_add_u32 s8, s7, {u*8*8192}\nbuffer_load_dwordx4 v[{STG+4*u}:{STG+4*u+3}], v10, s[52:55], s8 offen')
            a('s_waitcnt vmcnt(0)')
            for u in range(4):
                a(f'ds_write_b128 v12, v[{STG+4*u}:{STG+4*u+3}] offset:{u*8*144}')
            a('s_waitcnt lgkmcnt(0)')
            for nt in range(4):
                for hf in range(2):
                    a(f'ds_read_b64_tr_b16 v[{STG+4*nt+2*hf}:{STG+4*nt+2*hf+1}], v13 offset:{4*hf*144 + nt*32}')
            a('s_waitcnt lgkmcnt(0)')
            for nt in range(4):
                tile = mat*4 + nt
                for r in range(4):
                    if tile < 4:
                        a(f'v_accvgpr_write_b32 a{(tile*14+ks)*4+r}, v{STG+4*nt+r}')
                    elif tile < 6:
                        a(f'v_mov_b32 v{128+((tile-4)*14+ks)*4+r}, v{STG+4*nt+r}')
                if tile >= 6:
                    a(f'ds_write_b128 v14, v[{STG+4*nt}:{STG+4*nt+3}] offset:{((tile-6)*14+ks)*1024}')
            a('s_waitcnt lgkmcnt(0)')
    a('s_barrier')
    a(f'''
    v_and_b32 v9, 7, v3
    v_mul_u32_u24 v9, {RSM}, v9
    v_lshlrev_b32 v10, 4, v4
    v_add_u32 v9, v9, v10
    v_add_u32 v9, {LDS_MEM}, v9
    v_lshlrev_b32 v15, 13, v3
    v_lshlrev_b32 v16, 3, v4
    v_add_u32 v15, v15, v16
    v_lshlrev_b32 v16, 2, v1
    v_add_u32 v17, {LDS_MEM+8192}, v16
    s_mul_i32 s4, s3, 3072
    v_add_u32 v16, s4, v17
    v_mul_u32_u24 v18, 20, v3
    v_lshlrev_b32 v19, 1, v4
    v_add_u32 v18, v18, v19
    v_lshlrev_b32 v18, 3, v18
    s_mov_b32 s56, s{P(15)}
    s_mov_b32 s57, s{P(15)+1}
    s_mov_b32 s58, 0x7fffffff
    s_mov_b32 s59, 0x00020000
    s_mov_b32 s9, {s_first}
    ''')
    loop = a.label('aloop')
    a(f'{loop}:')
    KX = 112
    a(f's_lshl_b32 s10, s9, 18')
    a(f's_add_u32 s10, s10, s6')
    a(f's_add_u32 s10, s10, {WS_KX}')
    for mt in range(2):
        a(f's_add_u32 s11, s10, {mt*16*8192}')
        for kk in range(2):
            a(f'buffer_load_dwordx2 v[{KX+(mt*2+kk)*4}:{KX+(mt*2+kk)*4+1}], v15, s[56:59], s11 offen offset:{kk*64}')
            a(f'buffer_load_dwordx2 v[{KX+(mt*2+kk)*4+2}:{KX+(mt*2+kk)*4+3}], v15, s[56:59], s11 offen offset:{kk*64+32}')
    emit_poll_mem(a, 's9')
    MF = 56
    ACC = 24
    for ks in range(14):
        a(f'ds_read_b128 v[{MF+4*ks}:{MF+4*ks+3}], v9 offset:{ks*64}')
    for r in range(32):
        a(f'v_mov_b32 v{ACC+r}, 0')
    a('s_waitcnt lgkmcnt(0)')
    WT = 240
    for ks in range(14):
        for t2 in range(2):
            a(f'ds_read_b128 v[{WT+4*t2}:{WT+4*t2+3}], v14 offset:{(t2*14+ks)*1024}')
        for tile in range(6):
            src = f'a[{(tile*14+ks)*4}:{(tile*14+ks)*4+3}]' if tile < 4 else f'v[{128+((tile-4)*14+ks)*4}:{128+((tile-4)*14+ks)*4+3}]'
            a(f'v_mfma_f32_16x16x32_bf16 v[{ACC+4*tile}:{ACC+4*tile+3}], {src}, v[{MF+4*ks}:{MF+4*ks+3}], v[{ACC+4*tile}:{ACC+4*tile+3}]')
        a('s_waitcnt lgkmcnt(0)')
        for t2 in range(2):
            tile = 6+t2
            a(f'v_mfma_f32_16x16x32_bf16 v[{ACC+4*tile}:{ACC+4*tile+3}], v[{WT+4*t2}:{WT+4*t2+3}], v[{MF+4*ks}:{MF+4*ks+3}], v[{ACC+4*tile}:{ACC+4*tile+3}]')
    a('s_nop 7')
    a('s_nop 1')
    if DEBUG:
        dl = a.label('dbgskip')
        a('s_cmp_lg_u32 s9, 0')
        a(f's_cbranch_scc1 {dl}')
        a('s_cmp_lg_u32 s2, 0')
        a(f's_cbranch_scc1 {dl}')
        a('v_lshlrev_b32 v100, 7, v0')
        a('v_lshrrev_b32 v101, 4, v0')
        a('v_mul_u32_u24 v101, 1920, v101')
        a('v_add_u32 v100, v100, v101')
        a(f's_mov_b32 s12, {200*M}')
        for r in range(0,32,4):
            a(f'buffer_store_dwordx4 v[{ACC+r}:{ACC+r+3}], v100, s[56:59], s12 offen offset:{r*4}')
        a(f'buffer_store_dwordx4 v[56:59], v100, s[56:59], s12 offen offset:{1<<11}')
        for r in range(4): a(f'v_accvgpr_read_b32 v{104+r}, a{r}')
        a('s_nop 1')
        a(f'buffer_store_dwordx4 v[104:107], v100, s[56:59], s12 offen offset:{(1<<11)+16}')
        a('s_waitcnt vmcnt(0)')
        a(f'{dl}:')
    QP = 56; KP = 64
    for kk in range(2):
        for half in range(2):
            t = 2*kk + half
            a(f'v_cvt_pk_bf16_f32 v{QP+4*kk+2*half}, v{ACC+4*t}, v{ACC+4*t+1}')
            a(f'v_cvt_pk_bf16_f32 v{QP+4*kk+2*half+1}, v{ACC+4*t+2}, v{ACC+4*t+3}')
            t = 4 + 2*kk + half
            a(f'v_cvt_pk_bf16_f32 v{KP+4*kk+2*half}, v{ACC+4*t}, v{ACC+4*t+1}')
            a(f'v_cvt_pk_bf16_f32 v{KP+4*kk+2*half+1}, v{ACC+4*t+2}, v{ACC+4*t+3}')
    SP = 72
    for r in range(12):
        a(f'v_mov_b32 v{SP+r}, 0')
    a('s_waitcnt vmcnt(0)')
    a('s_nop 1')
    for kk in range(2):
        a(f'v_mfma_f32_16x16x32_bf16 v[{SP}:{SP+3}], v[{KP+4*kk}:{KP+4*kk+3}], v[{QP+4*kk}:{QP+4*kk+3}], v[{SP}:{SP+3}]')
        for mt in range(2):
            o = KX+(mt*2+kk)*4
            a(f'v_mfma_f32_16x16x32_bf16 v[{SP+4+4*mt}:{SP+4+4*mt+3}], v[{o}:{o+3}], v[{QP+4*kk}:{QP+4*kk+3}], v[{SP+4+4*mt}:{SP+4+4*mt+3}]')
    a('s_nop 7')
    a('s_nop 1')
    for r in range(12):
        a(f'ds_write_b32 v16, v{SP+r} offset:{r*256}')
    a('s_waitcnt lgkmcnt(0)')
    a('s_barrier')
    T0 = 24
    for w in range(4):
        for r in range(12):
            a(f'ds_read_b32 v{T0+12*w+r}, v17 offset:{w*3072 + r*256}')
    a('s_waitcnt lgkmcnt(0)')
    for r in range(12):
        a(f'v_add_f32 v{SP+r}, v{T0+r}, v{T0+12+r}')
        a(f'v_add_f32 v{T0+24+r}, v{T0+24+r}, v{T0+36+r}')
    for r in range(12):
        a(f'v_add_f32 v{SP+r}, v{SP+r}, v{T0+24+r}')
    for r in range(0,12,2):
        a(f'v_cvt_pk_bf16_f32 v{T0}, v{SP+r}, v{SP+r+1}')
        a(f'v_lshlrev_b32 v{SP+r}, 16, v{T0}')
        a(f'v_and_b32 v{SP+r+1}, 0xffff0000, v{T0}')
    for r in range(12):
        a(f'v_mul_f32 v{SP+r}, 0x3d800000, v{SP+r}')
    a('v_cmp_gt_u32 vcc, 2, v4')
    a('s_mov_b32 s12, 0xff800000')
    a('v_mov_b32 v96, s12')
    for r in range(4):
        a(f'v_cndmask_b32 v{SP+r}, v96, v{SP+r}, vcc')
    a(f'v_max3_f32 v97, v{SP}, v{SP+1}, v{SP+2}')
    for r in range(3,11,2):
        a(f'v_max3_f32 v97, v97, v{SP+r}, v{SP+r+1}')
    a(f'v_max_f32 v97, v97, v{SP+11}')
    a('ds_bpermute_b32 v98, v5, v97')
    a('s_waitcnt lgkmcnt(0)')
    a('v_max_f32 v97, v97, v98')
    a('ds_bpermute_b32 v98, v6, v97')
    a('s_waitcnt lgkmcnt(0)')
    a('v_max_f32 v97, v97, v98')
    a('s_mov_b32 s12, 0x3fb8aa3b')
    for r in range(12):
        a(f'v_sub_f32 v{SP+r}, v{SP+r}, v97')
        a(f'v_mul_f32 v{SP+r}, s12, v{SP+r}')
        a(f'v_exp_f32 v{SP+r}, v{SP+r}')
    a('s_nop 0')
    a(f'v_add_f32 v98, v{SP}, v{SP+1}')
    for r in range(2,12):
        a(f'v_add_f32 v98, v98, v{SP+r}')
    a('ds_bpermute_b32 v99, v5, v98')
    a('s_waitcnt lgkmcnt(0)')
    a('v_add_f32 v98, v98, v99')
    a('ds_bpermute_b32 v99, v6, v98')
    a('s_waitcnt lgkmcnt(0)')
    a('v_add_f32 v98, v98, v99')
    a('v_rcp_f32 v98, v98')
    a('s_nop 0')
    for r in range(12):
        a(f'v_mul_f32 v{SP+r}, v{SP+r}, v98')
    skip = a.label('nopub')
    a('s_cmp_lg_u32 s3, 0')
    a(f's_cbranch_scc1 {skip}')
    a(f's_mul_i32 s12, s9, {PB_STRIDE}')
    a(f's_mul_i32 s13, s2, 1280')
    a(f's_add_u32 s12, s12, s13')
    a(f's_add_u32 s12, s12, {WS_PB}')
    a('s_add_u32 s13, s9, 1')
    a('v_cmp_gt_u32 vcc, 8, v3')
    a('s_and_saveexec_b64 s[14:15], vcc')
    for mt in range(3):
        if mt == 0:
            a('v_cmp_gt_u32 vcc, 2, v4')
            a('s_and_saveexec_b64 s[60:61], vcc')
        for hf in range(2):
            a(f'v_cvt_pk_bf16_f32 v100, v{SP+4*mt+2*hf}, v{SP+4*mt+2*hf+1}')
            a('v_mov_b32 v101, s13')
            a(f'buffer_store_dwordx2 v[100:101], v18, s[56:59], s12 offen offset:{([0,4,12][mt]+hf)*8} sc1')
        if mt == 0:
            a('s_mov_b64 exec, s[60:61]')
    a('s_mov_b64 exec, s[14:15]')
    a(f'{skip}:')
    a('s_add_u32 s9, s9, 1')
    a(f's_cmp_lt_u32 s9, {s_last}')
    a(f's_cbranch_scc1 {loop}')

def emit_roleB(a, s_first, s_last):
    a(f'''
    ; ---- role B
    s_sub_u32 s20, s2, 16                ; c
    v_lshrrev_b32 v9, 1, v1
    v_mul_u32_u24 v10, 896, v9
    v_and_b32 v11, 1, v1
    v_lshlrev_b32 v11, 4, v11
    v_add_u32 v10, v10, v11
    v_mul_u32_u24 v12, 48, v9
    v_add_u32 v12, v12, v11
    s_mul_i32 s4, s3, 1536
    s_add_u32 s4, s4, {LDS_MEM}
    v_add_u32 v12, s4, v12
    v_lshrrev_b32 v13, 2, v3
    v_lshlrev_b32 v14, 3, v4
    v_add_u32 v13, v13, v14
    v_mul_u32_u24 v13, 48, v13
    v_and_b32 v14, 3, v3
    v_lshlrev_b32 v14, 3, v14
    v_add_u32 v13, v13, v14
    v_add_u32 v13, s4, v13
    s_mul_i32 s6, s3, {4*401408}
    s_lshl_b32 s7, s20, 5
    s_add_u32 s6, s6, s7
    s_add_u32 s6, s6, {WS_WVO}
    ''')
    for hh in range(4):
        for ks in range(14):
            a(f's_add_u32 s7, s6, {hh*401408 + ks*32*896}')
            a(f'buffer_load_dwordx4 v[26:29], v10, s[48:51], s7 offen')
            a('s_waitcnt vmcnt(0)')
            a('ds_write_b128 v12, v[26:29]')
            a('s_waitcnt lgkmcnt(0)')
            for hf in range(2):
                a(f'ds_read_b64_tr_b16 v[{30+2*hf}:{31+2*hf}], v13 offset:{4*hf*48}')
            a('s_waitcnt lgkmcnt(0)')
            for r in range(4):
                a(f'v_accvgpr_write_b32 a{(hh*14+ks)*4+r}, v{30+r}')
    a('s_barrier')
    a(f'''
    v_mov_b32 v26, 0
    v_mov_b32 v27, 0
    v_mov_b32 v28, 0
    v_mov_b32 v29, 0
    v_lshlrev_b32 v9, 5, v0
    v_add_u32 v9, {LDS_MEM + 40*RSM}, v9
    v_cmp_gt_u32 vcc, 228, v0
    s_and_saveexec_b64 s[14:15], vcc
    ds_write_b128 v9, v[26:29]
    ds_write_b128 v9, v[26:29] offset:16
    s_mov_b64 exec, s[14:15]
    ; x rows load: 32 rows * 896 B = 1792 chunks of 16B = 7 per thread: chunk = t + 256u : row = chunk/56, cc = chunk%56
    ''')
    XV = 226
    for u in range(7):
        a(f'v_add_u32 v9, {256*u}, v0')
        a('s_mov_b32 s12, 0x4924925')
        a('v_mul_hi_u32 v10, v9, s12')
        a('v_mul_u32_u24 v11, 56, v10')
        a('v_sub_u32 v11, v9, v11')
        a(f'v_mul_u32_u24 v12, {RSM}, v10')
        a('v_lshlrev_b32 v11, 4, v11')
        a('v_add_u32 v12, v12, v11')
        a(f'v_add_u32 v{XV+u}, {LDS_MEM + 8*RSM}, v12')
    a(f'''
    v_lshlrev_b32 v233, 4, v0
    s_mov_b32 s52, s{P(0)}
    s_mov_b32 s53, s{P(0)+1}
    s_mov_b32 s54, 0x7fffffff
    s_mov_b32 s55, 0x00020000
    v_mul_u32_u24 v9, {RSM}, v3
    v_lshlrev_b32 v10, 4, v4
    v_add_u32 v9, v9, v10
    v_add_u32 v9, {LDS_MEM}, v9
    v_and_b32 v15, 7, v3
    v_mul_u32_u24 v15, 20, v15
    v_lshlrev_b32 v16, 1, v4
    v_add_u32 v15, v15, v16
    v_lshlrev_b32 v15, 3, v15
    v_and_b32 v21, 7, v3
    v_mul_u32_u24 v21, 20, v21
    v_and_b32 v22, 1, v4
    v_lshlrev_b32 v22, 1, v22
    v_add_u32 v21, v21, v22
    v_lshlrev_b32 v21, 3, v21
    v_lshlrev_b32 v16, 2, v1
    v_add_u32 v17, {LDS_RED}, v16
    s_lshl_b32 s4, s3, 10
    v_add_u32 v16, s4, v17
    v_lshlrev_b32 v18, 3, v3
    v_lshlrev_b32 v19, 1, v4
    v_add_u32 v18, v18, v19
    v_lshlrev_b32 v18, 3, v18
    v_mul_u32_u24 v19, 896, v3
    v_lshlrev_b32 v20, 3, v4
    v_add_u32 v19, v19, v20
    s_mov_b32 s9, {s_first}
    ''')
    loop = a.label('bloop')
    a(f'{loop}:')
    a('s_mul_i32 s10, s9, 28672')
    for u in range(7):
        a(f'buffer_load_dwordx4 v[{100+4*u}:{103+4*u}], v233, s[52:55], s10 offen offset:0' if u == 0 else
          f's_add_u32 s11, s10, {u*4096}\nbuffer_load_dwordx4 v[{100+4*u}:{103+4*u}], v233, s[52:55], s11 offen')
    a('s_waitcnt vmcnt(0)')
    for u in range(7):
        a(f'ds_write_b128 v{XV+u}, v[{100+4*u}:{103+4*u}]')
    emit_poll_mem(a, 's9')
    TA = 32
    HF = 80
    for r in range(48):
        a(f'v_mov_b32 v{TA+r}, 0')
    for ks in range(14):
        for mt in range(3):
            a(f'ds_read_b128 v[{HF+4*mt}:{HF+4*mt+3}], v9 offset:{mt*16*RSM + ks*64}')
        a('s_waitcnt lgkmcnt(0)')
        for hh in range(4):
            for mt in range(3):
                acc = TA + (hh*3+mt)*4
                a(f'v_mfma_f32_16x16x32_bf16 v[{acc}:{acc+3}], v[{HF+4*mt}:{HF+4*mt+3}], a[{(hh*14+ks)*4}:{(hh*14+ks)*4+3}], v[{acc}:{acc+3}]')
    a('s_nop 7')
    a('s_nop 1')
    TP = 100
    for hh in range(4):
        for mt in range(3):
            acc = TA + (hh*3+mt)*4
            o = TP + hh*8 + (mt//2)*4 + (mt%2)*2
            a(f'v_cvt_pk_bf16_f32 v{o}, v{acc}, v{acc+1}')
            a(f'v_cvt_pk_bf16_f32 v{o+1}, v{acc+2}, v{acc+3}')
        a(f'v_mov_b32 v{TP+hh*8+6}, 0')
        a(f'v_mov_b32 v{TP+hh*8+7}, 0')
    PP = 132
    lp = a.label('pollp')
    a(f's_mul_i32 s12, s9, {PB_STRIDE}')
    a(f's_mul_i32 s13, s3, {4*1280}')
    a('s_add_u32 s12, s12, s13')
    a(f's_add_u32 s12, s12, {WS_PB}')
    a('s_add_u32 s13, s9, 1')
    a(f'{lp}:')
    for hh in range(4):
        for q in range(6):
            mt, hf = q//2, q%2
            a(f'buffer_load_dwordx2 v[{PP+(hh*6+q)*2}:{PP+(hh*6+q)*2+1}], {"v21" if mt==2 else "v15"}, s[48:51], s12 offen offset:{hh*1280 + (8*mt+hf)*8} sc1')
    a('s_waitcnt vmcnt(0)')
    a(f'v_xor_b32 v24, s13, v{PP+1}')
    for k in range(1,24):
        a(f'v_xor_b32 v25, s13, v{PP+2*k+1}')
        a('v_or_b32 v24, v24, v25')
    a('v_cmp_ne_u32 vcc, 0, v24')
    a(f's_cbranch_vccnz {lp}')
    PB2 = 180
    for hh in range(4):
        for q in range(6):
            mt, hf = q//2, q%2
            a(f'v_mov_b32 v{PB2 + hh*8 + (mt//2)*4 + (mt%2)*2 + hf}, v{PP+(hh*6+q)*2}')
        a(f'v_mov_b32 v{PB2+hh*8+6}, 0')
        a(f'v_mov_b32 v{PB2+hh*8+7}, 0')
    for r in range(4):
        a(f'v_mov_b32 v{TA+r}, 0')
    a('s_nop 1')
    for hh in range(4):
        for k2 in range(2):
            a(f'v_mfma_f32_16x16x32_bf16 v[{TA}:{TA+3}], v[{TP+hh*8+k2*4}:{TP+hh*8+k2*4+3}], v[{PB2+hh*8+k2*4}:{PB2+hh*8+k2*4+3}], v[{TA}:{TA+3}]')
    a('s_nop 7')
    a('s_nop 1')
    for r in range(4):
        a(f'ds_write_b32 v16, v{TA+r} offset:{r*256}')
    a('s_waitcnt lgkmcnt(0)')
    a('s_barrier')
    skip = a.label('nopubB')
    a('s_cmp_lg_u32 s3, 0')
    a(f's_cbranch_scc1 {skip}')
    for w in range(4):
        for r in range(4):
            a(f'ds_read_b32 v{TA+4*w+r}, v17 offset:{w*1024 + r*256}')
    a('s_waitcnt lgkmcnt(0)')
    for r in range(4):
        a(f'v_add_f32 v{TA+r}, v{TA+r}, v{TA+4+r}')
        a(f'v_add_f32 v{TA+8+r}, v{TA+8+r}, v{TA+12+r}')
        a(f'v_add_f32 v{TA+r}, v{TA+r}, v{TA+8+r}')
    a(f'v_cvt_pk_bf16_f32 v{TA+16}, v{TA}, v{TA+1}')
    a(f'v_cvt_pk_bf16_f32 v{TA+18}, v{TA+2}, v{TA+3}')
    a('s_add_u32 s13, s9, 2')
    a(f'v_mov_b32 v{TA+17}, s13')
    a(f'v_mov_b32 v{TA+19}, s13')
    a(f'v_mov_b32 v{TA+20}, v{TA+16}')
    a(f'v_mov_b32 v{TA+21}, v{TA+18}')
    a('s_add_u32 s12, s9, 1')
    a(f's_mul_i32 s12, s12, {MB_STRIDE}')
    a('s_lshl_b32 s13, s20, 9')
    a('s_add_u32 s12, s12, s13')
    a(f's_add_u32 s12, s12, {WS_MB}')
    a('s_add_u32 s13, s9, 1')
    a('s_mul_i32 s13, s13, 7168')
    a('s_lshl_b32 s21, s20, 5')
    a('s_add_u32 s13, s13, s21')
    a(f's_add_u32 s13, s13, {WS_MEM}')
    a('v_cmp_gt_u32 vcc, 8, v3')
    a('s_and_saveexec_b64 s[14:15], vcc')
    a(f'buffer_store_dwordx2 v[{TA+16}:{TA+17}], v18, s[48:51], s12 offen sc1')
    a(f'buffer_store_dwordx2 v[{TA+18}:{TA+19}], v18, s[48:51], s12 offen offset:8 sc1')
    a(f'buffer_store_dwordx2 v[{TA+20}:{TA+21}], v19, s[48:51], s13 offen')
    a('s_mov_b64 exec, s[14:15]')
    a(f'{skip}:')
    a('s_barrier')
    a('s_add_u32 s9, s9, 1')
    a(f's_cmp_lt_u32 s9, {s_last}')
    a(f's_cbranch_scc1 {loop}')
```

```python
from asmlib import *

RSA = 144
RSB_128 = 272
RSB_64 = 144

def gemm_lds_bytes(BM, BN):
    rsb = RSB_128 if BN == 128 else RSB_64
    return 2 * (BM * RSA + 64 * rsb)

def emit_gemm(a, BM, BN, sA, sB, sC, sLda, sLdb, sLdc, sKt, sM0, sN0, ldsbase=0):
    rsb = RSB_128 if BN == 128 else RSB_64
    LDS_A = BM * RSA
    LDS_B = 64 * rsb
    LDS_BUF = LDS_A + LDS_B
    nA = BM // 32
    cpr = BN // 8
    rows_per_pass = 256 // cpr
    nB = 64 // rows_per_pass
    WM = BM // 2; WN = BN // 2
    MT = WM // 16; NT = WN // 16
    a(f'''
    v_lshrrev_b32 v1, 3, v0
    v_and_b32 v2, 7, v0
    v_mul_lo_u32 v3, v1, {sLda}
    v_lshlrev_b32 v4, 4, v2
    v_add_u32 v3, v3, v4
    v_mul_u32_u24 v5, {RSA}, v1
    v_add_u32 v5, v5, v4
    v_add_u32 v5, {ldsbase}, v5
    v_lshrrev_b32 v6, {cpr.bit_length()-1}, v0
    v_and_b32 v7, {cpr-1}, v0
    v_lshlrev_b32 v8, 4, v7
    v_mul_lo_u32 v9, v6, {sLdb}
    v_add_u32 v9, v9, v8
    v_mul_u32_u24 v10, {rsb}, v6
    v_add_u32 v10, v10, v8
    v_add_u32 v10, {LDS_A + ldsbase}, v10
    s_mul_i32 s60, {sM0}, {sLda}
    s_lshl_b32 s65, {sLda}, 5
    ''')
    for i in range(1, nA):
        a(f's_add_u32 s{60+i}, s{60+i-1}, s65')
    a(f's_lshl_b32 s66, {sN0}, 1')
    a(f's_mov_b32 s68, s66')
    a(f's_mul_i32 s65, {sLdb}, {rows_per_pass}')
    for i in range(1, nB):
        a(f's_add_u32 s{68+i}, s{68+i-1}, s65')
    a(f's_lshl_b32 s67, {sLdb}, 6')
    a(f'''
    v_and_b32 v11, 63, v0
    v_lshrrev_b32 v12, 6, v0
    v_and_b32 v13, 15, v11
    v_lshrrev_b32 v14, 4, v11
    v_and_b32 v15, 1, v12
    v_lshrrev_b32 v16, 1, v12
    v_mul_u32_u24 v17, {WM}, v15
    v_add_u32 v17, v17, v13
    v_mul_u32_u24 v17, {RSA}, v17
    v_lshlrev_b32 v18, 4, v14
    v_add_u32 v17, v17, v18
    v_add_u32 v17, {ldsbase}, v17
    v_lshrrev_b32 v18, 2, v13
    v_lshlrev_b32 v19, 3, v14
    v_add_u32 v18, v18, v19
    v_mul_u32_u24 v18, {rsb}, v18
    v_and_b32 v19, 3, v13
    v_lshlrev_b32 v19, 3, v19
    v_add_u32 v18, v18, v19
    v_mul_u32_u24 v19, {WN*2}, v16
    v_add_u32 v18, v18, v19
    v_add_u32 v18, {LDS_A + ldsbase}, v18
    ''')
    ACC = 64; STG = 128; XF = 32; WF = 48
    for r in range(MT*NT*4):
        a(f'v_mov_b32 v{ACC+r}, 0')
    def issue_loads():
        for i in range(nA):
            a(f'buffer_load_dwordx4 v[{STG+4*i}:{STG+4*i+3}], v3, {sr(sA,4)}, s{60+i} offen')
        for i in range(nB):
            a(f'buffer_load_dwordx4 v[{STG+16+4*i}:{STG+16+4*i+3}], v9, {sr(sB,4)}, s{68+i} offen')
        a('v_add_u32 v3, 128, v3')
        a(f'v_add_u32 v9, s67, v9')
    def write_lds(bufoff):
        for i in range(nA):
            a(f'ds_write_b128 v5, v[{STG+4*i}:{STG+4*i+3}] offset:{bufoff + i*32*RSA}')
        for i in range(nB):
            a(f'ds_write_b128 v10, v[{STG+16+4*i}:{STG+16+4*i+3}] offset:{bufoff + i*rows_per_pass*rsb}')
    issue_loads()
    a('s_waitcnt vmcnt(0)')
    write_lds(0)
    a('s_waitcnt lgkmcnt(0)')
    a('s_barrier')
    a('s_mov_b32 s72, 0')
    loop = a.label('gk'); done = a.label('gkdone')
    a(f'{loop}:')
    for par in range(2):
        bufoff = par*LDS_BUF; nbuf = (1-par)*LDS_BUF
        skip = a.label('noload')
        a(f's_add_u32 s73, s72, 1')
        a(f's_cmp_ge_u32 s73, {sKt}')
        a(f's_cbranch_scc1 {skip}')
        issue_loads()
        a(f'{skip}:')
        for ks in range(2):
            for mt in range(MT):
                a(f'ds_read_b128 v[{XF+4*mt}:{XF+4*mt+3}], v17 offset:{bufoff + mt*16*RSA + ks*64}')
            for nt in range(NT):
                for hf in range(2):
                    a(f'ds_read_b64_tr_b16 v[{WF+4*nt+2*hf}:{WF+4*nt+2*hf+1}], v18 offset:{bufoff + (ks*32+4*hf)*rsb + nt*32}')
            a('s_waitcnt lgkmcnt(0)')
            for nt in range(NT):
                for mt in range(MT):
                    acc = ACC + (nt*MT+mt)*4
                    a(f'v_mfma_f32_16x16x32_bf16 v[{acc}:{acc+3}], v[{WF+4*nt}:{WF+4*nt+3}], v[{XF+4*mt}:{XF+4*mt+3}], v[{acc}:{acc+3}]')
        a('s_waitcnt vmcnt(0)')
        write_lds(nbuf)
        a('s_waitcnt lgkmcnt(0)')
        a('s_barrier')
        a('s_add_u32 s72, s72, 1')
        a(f's_cmp_ge_u32 s72, {sKt}')
        a(f's_cbranch_scc1 {done}')
    a(f's_branch {loop}')
    a(f'{done}:')
    a('s_nop 7')
    a('s_nop 7')
    a(f'''
    v_mul_u32_u24 v20, {WM}, v15
    v_add_u32 v20, v20, v13
    v_mul_lo_u32 v20, v20, {sLdc}
    v_mul_u32_u24 v21, {WN*2}, v16
    v_lshlrev_b32 v22, 3, v14
    v_add3_u32 v20, v20, v21, v22
    s_mul_i32 s74, {sM0}, {sLdc}
    s_add_u32 s74, s74, s66
    s_lshl_b32 s76, {sLdc}, 4
    ''')
    for mt in range(MT):
        if mt: a('s_add_u32 s74, s74, s76')
        for nt in range(NT):
            acc = ACC + (nt*MT+mt)*4
            a(f'v_cvt_pk_bf16_f32 v24, v{acc}, v{acc+1}')
            a(f'v_cvt_pk_bf16_f32 v25, v{acc+2}, v{acc+3}')
            a(f'buffer_store_dwordx2 v[24:25], v20, {sr(sC,4)}, s74 offen offset:{nt*32}')
```

```python
from asmlib import *
from gemmlib import *
from chainlib import *
from attnlib import *
import sys

def prologue(a):
    a('''
    s_load_dwordx16 s[16:31], s[0:1], 0
    s_load_dwordx16 s[32:47], s[0:1], 64
    s_waitcnt lgkmcnt(0)
    ''')

def k1_prep():
    a = Asm(); name = 'k1_prep_kernel'
    kernel_header(a, name); prologue(a)
    NG = 3072; NW = 784; NZ = 64
    a(f'''
    s_cmp_ge_u32 s2, {NG+NW+NZ}
    s_cbranch_scc1 L_k1_end
    s_cmp_ge_u32 s2, {NG+NW}
    s_cbranch_scc1 L_k1_zero
    s_cmp_ge_u32 s2, {NG}
    s_cbranch_scc1 L_k1_wvo
    s_lshr_b32 s3, s2, 9
    s_and_b32 s4, s2, 511
    s_lshr_b32 s5, s4, 5
    s_lshl_b32 s5, s5, 7                ; m0
    s_and_b32 s6, s4, 31
    s_lshl_b32 s6, s6, 7                ; n0
    s_mov_b32 s48, s16
    s_mov_b32 s49, s17
    s_mov_b32 s52, s20
    s_mov_b32 s53, s21
    s_mov_b32 s56, s46
    s_mov_b32 s57, s47
    s_mov_b32 s7, 896
    s_mov_b32 s8, 7
    ''')
    for g,(pa,pb,off,lda,kt) in enumerate([(0,2,WS_QX,896,7),(0,3,WS_KX,896,7),(0,4,WS_VX,896,7),(7,9,WS_BQ,896,7),(8,10,WS_BK,2048,16),(8,11,WS_BV,2048,16)]):
        nxt = a.label('sel')
        a(f's_cmp_lg_u32 s3, {g}')
        a(f's_cbranch_scc1 {nxt}')
        a(f'''
        s_mov_b32 s48, s{P(pa)}
        s_mov_b32 s49, s{P(pa)+1}
        s_mov_b32 s52, s{P(pb)}
        s_mov_b32 s53, s{P(pb)+1}
        s_add_u32 s56, s{P(15)}, {off}
        s_addc_u32 s57, s{P(15)+1}, 0
        s_mov_b32 s7, {lda}
        s_mov_b32 s8, {kt}
        ''')
        a(f'{nxt}:')
    a('''
    s_mov_b32 s50, 0x7fffffff
    s_mov_b32 s51, 0x00020000
    s_mov_b32 s54, 0x7fffffff
    s_mov_b32 s55, 0x00020000
    s_mov_b32 s58, 0x7fffffff
    s_mov_b32 s59, 0x00020000
    s_mov_b32 s9, 8192
    ''')
    emit_gemm(a, 128, 128, 48, 52, 56, 's7', 's9', 's9', 's8', 's5', 's6')
    a('s_branch L_k1_end')
    a('L_k1_wvo:')
    a(f'''
    s_sub_u32 s3, s2, {NG}
    s_mul_hi_u32 s4, s3, 0x539782a      ; /49
    s_mul_i32 s5, s4, 49
    s_sub_u32 s5, s3, s5
    s_mul_hi_u32 s6, s5, 0x24924925     ; /7
    s_mul_i32 s7, s6, 7
    s_sub_u32 s7, s5, s7
    s_lshl_b32 s10, s6, 6               ; m0
    s_lshl_b32 s11, s7, 6               ; n0
    s_lshl_b32 s12, s4, 9               ; h*512
    s_add_u32 s48, s{P(4)}, s12
    s_addc_u32 s49, s{P(4)+1}, 0
    s_mul_i32 s12, s4, 229376
    s_add_u32 s52, s{P(5)}, s12
    s_addc_u32 s53, s{P(5)+1}, 0
    s_mul_i32 s12, s4, 401408
    s_add_u32 s12, s12, {WS_WVO}
    s_add_u32 s56, s{P(15)}, s12
    s_addc_u32 s57, s{P(15)+1}, 0
    s_mov_b32 s50, 0x7fffffff
    s_mov_b32 s51, 0x00020000
    s_mov_b32 s54, 0x7fffffff
    s_mov_b32 s55, 0x00020000
    s_mov_b32 s58, 0x7fffffff
    s_mov_b32 s59, 0x00020000
    s_mov_b32 s7, 8192
    s_mov_b32 s9, 896
    s_mov_b32 s8, 4
    ''')
    emit_gemm(a, 64, 64, 48, 52, 56, 's7', 's9', 's9', 's8', 's10', 's11')
    a('s_branch L_k1_end')
    a('L_k1_zero:')
    a(f'''
    s_sub_u32 s3, s2, {NG+NW}
    s_mov_b32 s48, s{P(15)}
    s_mov_b32 s49, s{P(15)+1}
    s_mov_b32 s50, 0x7fffffff
    s_mov_b32 s51, 0x00020000
    s_mov_b32 s52, s{P(1)}
    s_mov_b32 s53, s{P(1)+1}
    s_mov_b32 s54, 7168
    s_mov_b32 s55, 0x00020000
    v_mov_b32 v4, 0
    v_mov_b32 v5, 0
    v_mov_b32 v6, 0
    v_mov_b32 v7, 0
    v_lshlrev_b32 v1, 4, v0
    s_lshl_b32 s4, s3, 16
    s_add_u32 s4, s4, {WS_MB}
    ''')
    for u in range(16):
        if u < 4:
            l2 = a.label('z')
            a(f's_cmp_eq_u32 s3, 0')
            a(f's_cbranch_scc1 {l2}')
        a(f's_add_u32 s5, s4, {u*4096}')
        a('buffer_store_dwordx4 v[4:7], v1, s[48:51], s5 offen')
        if u < 4:
            a(f'{l2}:')
    a(f'''
    s_cmp_lg_u32 s3, 0
    s_cbranch_scc1 L_k1_end
    ''')
    for u in range(7):
        a(f'''
        v_add_u32 v2, {256*u}, v0
        v_lshrrev_b32 v3, 6, v2
        v_and_b32 v8, 63, v2
        v_lshrrev_b32 v9, 3, v8
        v_mul_u32_u24 v9, 896, v9
        v_lshlrev_b32 v3, 5, v3
        v_add_u32 v9, v9, v3
        v_and_b32 v8, 7, v8
        v_lshlrev_b32 v8, 2, v8
        v_add_u32 v9, v9, v8
        buffer_load_dword v10, v9, s[52:55], 0 offen
        v_mov_b32 v11, 1
        v_lshlrev_b32 v2, 3, v2
        s_waitcnt vmcnt(0)
        buffer_store_dwordx2 v[10:11], v2, s[48:51], s4 offen
        s_mov_b32 s5, {WS_MEM}
        buffer_store_dword v10, v9, s[48:51], s5 offen
        ''')
    a('L_k1_end:')
    a('s_endpgm')
    return a, name, 160, f'grid=({NG+NW+NZ},1,1) block=(256,1,1) lds={gemm_lds_bytes(128,128)}'

def k2_chain():
    a = Asm(); name = 'k2_chain_kernel'
    kernel_header(a, name); prologue(a)
    a('s_cmp_ge_u32 s2, 44')
    a('s_cbranch_scc1 L_k2_end')
    emit_chain(a, 0, 63)
    a('L_k2_end:')
    a('s_endpgm')
    return a, name, 512, f'grid=(44,1,1) block=(256,1,1) lds={LDS_CHAIN}'

def ws_srd(a):
    a(f"""
    s_mov_b32 s48, s{P(15)}
    s_mov_b32 s49, s{P(15)+1}
    s_mov_b32 s50, 0x7fffffff
    s_mov_b32 s51, 0x00020000
    """)

def k3_kmvm():
    a = Asm(); name = 'k3_kmvm_kernel'
    kernel_header(a, name); prologue(a)
    a(f"""
    s_cmp_ge_u32 s2, 256
    s_cbranch_scc1 L_k3_end
    s_lshr_b32 s3, s2, 7                ; 0: K, 1: V
    s_and_b32 s4, s2, 127
    s_lshr_b32 s5, s4, 5
    s_lshl_b32 s5, s5, 7
    s_and_b32 s6, s4, 31
    s_lshl_b32 s6, s6, 7
    s_add_u32 s48, s{P(15)}, {WS_MEM}
    s_addc_u32 s49, s{P(15)+1}, 0
    s_cmp_eq_u32 s3, 0
    s_cselect_b32 s52, s{P(3)}, s{P(4)}
    s_cselect_b32 s53, s{P(3)+1}, s{P(4)+1}
    s_mov_b32 s13, {WS_VM}
    s_cselect_b32 s12, {WS_KM}, s13
    s_add_u32 s56, s{P(15)}, s12
    s_addc_u32 s57, s{P(15)+1}, 0
    s_mov_b32 s50, 0x7fffffff
    s_mov_b32 s51, 0x00020000
    s_mov_b32 s54, 0x7fffffff
    s_mov_b32 s55, 0x00020000
    s_mov_b32 s58, 0x7fffffff
    s_mov_b32 s59, 0x00020000
    s_mov_b32 s7, 896
    s_mov_b32 s8, 7
    s_mov_b32 s9, 8192
    """)
    emit_gemm(a, 128, 128, 48, 52, 56, 's7', 's9', 's9', 's8', 's5', 's6')
    a('L_k3_end:'); a('s_endpgm')
    return a, name, 160, f'grid=(256,1,1) block=(256,1,1) lds={gemm_lds_bytes(128,128)}'

def k4_xattn():
    a = Asm(); name = 'k4_xattn_kernel'
    kernel_header(a, name); prologue(a)
    a('s_cmp_ge_u32 s2, 256'); a('s_cbranch_scc1 L_k4_end')
    ws_srd(a); emit_xattn(a)
    a('L_k4_end:'); a('s_endpgm')
    return a, name, 168, f'grid=(256,1,1) block=(256,1,1) lds={4*48*RSV}'

def k5_flash():
    a = Asm(); name = 'k5_flash_kernel'
    kernel_header(a, name); prologue(a)
    a('s_cmp_ge_u32 s2, 256'); a('s_cbranch_scc1 L_k5_end')
    ws_srd(a); emit_flash(a)
    a('L_k5_end:'); a('s_endpgm')
    return a, name, 320, f'grid=(256,1,1) block=(256,1,1) lds={2*KVBUF}'

def k6_out():
    a = Asm(); name = 'k6_out_kernel'
    kernel_header(a, name); prologue(a)
    a(f"""
    s_cmp_ge_u32 s2, 448
    s_cbranch_scc1 L_k6_end
    s_mul_hi_u32 s3, s2, 0x124924a      ; /224
    s_mul_i32 s4, s3, 224
    s_sub_u32 s4, s2, s4
    s_mul_hi_u32 s5, s4, 0x24924925     ; /7
    s_mul_i32 s6, s5, 7
    s_sub_u32 s6, s4, s6
    s_lshl_b32 s10, s5, 6
    s_lshl_b32 s11, s6, 6
    s_cmp_eq_u32 s3, 0
    s_mov_b32 s13, {WS_CTX}
    s_cselect_b32 s12, {WS_OX}, s13
    s_cselect_b32 s52, s{P(5)}, s{P(12)}
    s_cselect_b32 s53, s{P(5)+1}, s{P(12)+1}
    s_cselect_b32 s14, 0, 896
    s_add_u32 s48, s{P(15)}, s12
    s_addc_u32 s49, s{P(15)+1}, 0
    s_add_u32 s56, s{P(13)}, s14
    s_addc_u32 s57, s{P(13)+1}, 0
    s_mov_b32 s50, 0x7fffffff
    s_mov_b32 s51, 0x00020000
    s_mov_b32 s54, 0x7fffffff
    s_mov_b32 s55, 0x00020000
    s_mov_b32 s58, 0x7fffffff
    s_mov_b32 s59, 0x00020000
    s_mov_b32 s7, 8192
    s_mov_b32 s9, 896
    s_mov_b32 s13, 1792
    s_mov_b32 s8, 64
    """)
    emit_gemm(a, 64, 64, 48, 52, 56, 's7', 's9', 's13', 's8', 's10', 's11')
    a('L_k6_end:'); a('s_endpgm')
    return a, name, 160, f'grid=(448,1,1) block=(256,1,1) lds={gemm_lds_bytes(64,64)}'

def build(kernels):
    hdr = ''
    body = '.amdgcn_target "amdgcn-amd-amdhsa--gfx950"\n.text\n'
    tail = '.section .rodata,"a"\n.p2align 6\n'
    for (a, name, vg, launch) in kernels:
        hdr += f'; @launch kernel={name} {launch}\n'
        body += a.text()
        tail += kernel_desc(name, vg, accum=(256 if vg > 256 else None))
    return hdr + body + tail

if __name__ == '__main__':
    open(sys.argv[1], 'w').write(build([k1_prep(), k2_chain(), k3_kmvm(), k4_xattn(), k5_flash(), k6_out()]))
```

```python
from asmlib import *
from chainlib import *

RSV = 528
def emit_xattn(a):
    a(f'''
    v_and_b32 v1, 63, v0
    v_lshrrev_b32 v2, 6, v0
    s_nop 1
    v_readfirstlane_b32 s3, v2
    v_and_b32 v3, 15, v1
    v_lshrrev_b32 v4, 4, v1
    s_lshl_b32 s4, s2, 2
    s_add_u32 s4, s4, s3
    s_lshr_b32 s5, s4, 4                 ; seg
    s_and_b32 s6, s4, 15                 ; head
    s_lshl_b32 s7, s6, 9                 ; h*512
    v_xor_b32 v5, 16, v1
    v_lshlrev_b32 v5, 2, v5
    v_xor_b32 v6, 32, v1
    v_lshlrev_b32 v6, 2, v6
    v_lshlrev_b32 v7, 13, v3
    v_lshlrev_b32 v8, 4, v4
    v_add_u32 v7, v7, v8
    s_lshl_b32 s8, s5, 18                ; 32s*8192
    s_add_u32 s8, s8, s7
    s_lshl_b32 s9, s5, 16                ; 8s*8192
    s_add_u32 s9, s9, s7
    s_add_u32 s9, s9, {WS_KM}
    v_lshlrev_b32 v9, 13, v3
    v_add_u32 v10, s9, v9
    s_add_u32 s10, s8, {WS_KX}
    v_add_u32 v11, s10, v9
    v_subrev_u32 v11, {8*8192}, v11
    v_cmp_gt_u32 vcc, 8, v3
    s_nop 1
    v_cndmask_b32 v10, v11, v10, vcc
    v_add_u32 v10, v10, v8
    v_add_u32 v11, s10, v9
    v_add_u32 v11, {8*8192}, v11
    v_add_u32 v11, v11, v8
    v_and_b32 v12, 7, v3
    v_lshlrev_b32 v12, 13, v12
    v_add_u32 v12, s10, v12
    v_add_u32 v12, {24*8192}, v12
    v_add_u32 v12, v12, v8
    ''')
    Q = 64
    for ct in range(2):
        a(f's_add_u32 s11, s8, {WS_QX + ct*16*8192}')
        for ks in range(8):
            a(f'buffer_load_dwordx4 v[{Q+(ct*8+ks)*4}:{Q+(ct*8+ks)*4+3}], v7, s[48:51], s11 offen offset:{ks*64}')
    a(f'''
    s_mul_i32 s12, s3, {48*RSV}
    v_lshrrev_b32 v13, 5, v1             ; 0/1
    v_and_b32 v14, 31, v1
    v_lshlrev_b32 v14, 4, v14            ; cc*16
    v_mul_u32_u24 v15, {RSV}, v13
    v_add_u32 v15, v15, v14
    v_add_u32 v15, s12, v15
    v_lshlrev_b32 v16, 13, v13
    v_add_u32 v16, v16, v14
    s_lshl_b32 s13, s5, 16
    s_add_u32 s13, s13, s7
    s_add_u32 s13, s13, {WS_VM}
    s_add_u32 s14, s8, {WS_VX}
    ''')
    for blk in range(5):
        for uu in range(4):
            u = blk*4+uu
            if u < 4: a(f's_add_u32 s15, s13, {2*u*8192}')
            else: a(f's_add_u32 s15, s14, {(2*u-8)*8192}')
            a(f'buffer_load_dwordx4 v[{32+4*uu}:{35+4*uu}], v16, s[48:51], s15 offen')
        a('s_waitcnt vmcnt(0)')
        for uu in range(4):
            u = blk*4+uu
            a(f'ds_write_b128 v15, v[{32+4*uu}:{35+4*uu}] offset:{2*u*RSV}')
    for r in range(4): a(f'v_mov_b32 v{32+r}, 0')
    for u in range(20, 24):
        a(f'ds_write_b128 v15, v[32:35] offset:{2*u*RSV}')
    S = 128
    for r in range(24): a(f'v_mov_b32 v{S+r}, 0')
    KF = 32
    for ks in range(8):
        for mt in range(3):
            a(f'buffer_load_dwordx4 v[{KF+4*mt}:{KF+4*mt+3}], v{10+mt}, s[48:51], 0 offen offset:{ks*64}')
        a('s_waitcnt vmcnt(0)')
        for mt in range(3):
            for ct in range(2):
                acc = S + (mt*2+ct)*4
                a(f'v_mfma_f32_16x16x32_bf16 v[{acc}:{acc+3}], v[{KF+4*mt}:{KF+4*mt+3}], v[{Q+(ct*8+ks)*4}:{Q+(ct*8+ks)*4+3}], v[{acc}:{acc+3}]')
    a('s_nop 7'); a('s_nop 1')
    a('s_mov_b32 s15, 0xff800000')
    a('v_lshlrev_b32 v17, 2, v4')
    for ct in range(2):
        for mt in range(3):
            acc = S + (mt*2+ct)*4
            for r in range(0,4,2):
                a(f'v_cvt_pk_bf16_f32 v32, v{acc+r}, v{acc+r+1}')
                a(f'v_lshlrev_b32 v{acc+r}, 16, v32')
                a(f'v_and_b32 v{acc+r+1}, 0xffff0000, v32')
            for r in range(4):
                a(f'v_mul_f32 v{acc+r}, 0x3d800000, v{acc+r}')
                a(f'v_add_u32 v33, {16*mt + r - 8 - 16*ct}, v17')
                a(f'v_cmp_le_i32 vcc, v33, v3')
                a('s_nop 1')
                a(f'v_cndmask_b32 v{acc+r}, s15, v{acc+r}, vcc' if False else f'v_mov_b32 v34, s15\nv_cndmask_b32 v{acc+r}, v34, v{acc+r}, vcc')
        regs = [S + (mt*2+ct)*4 + r for mt in range(3) for r in range(4)]
        a(f'v_max3_f32 v35, v{regs[0]}, v{regs[1]}, v{regs[2]}')
        for k in range(3,11,2): a(f'v_max3_f32 v35, v35, v{regs[k]}, v{regs[k+1]}')
        a(f'v_max_f32 v35, v35, v{regs[11]}')
        a('ds_bpermute_b32 v36, v5, v35'); a('s_waitcnt lgkmcnt(0)'); a('v_max_f32 v35, v35, v36')
        a('ds_bpermute_b32 v36, v6, v35'); a('s_waitcnt lgkmcnt(0)'); a('v_max_f32 v35, v35, v36')
        a('s_mov_b32 s16, 0x3fb8aa3b')
        for rg in regs:
            a(f'v_sub_f32 v{rg}, v{rg}, v35'); a(f'v_mul_f32 v{rg}, s16, v{rg}'); a(f'v_exp_f32 v{rg}, v{rg}')
        a('s_nop 0')
        a(f'v_add_f32 v36, v{regs[0]}, v{regs[1]}')
        for rg in regs[2:]: a(f'v_add_f32 v36, v36, v{rg}')
        a('ds_bpermute_b32 v37, v5, v36'); a('s_waitcnt lgkmcnt(0)'); a('v_add_f32 v36, v36, v37')
        a('ds_bpermute_b32 v37, v6, v36'); a('s_waitcnt lgkmcnt(0)'); a('v_add_f32 v36, v36, v37')
        a('v_rcp_f32 v36, v36'); a('s_nop 0')
        for rg in regs: a(f'v_mul_f32 v{rg}, v{rg}, v36')
        PO = 152 + ct*8
        for mt in range(3):
            acc = S + (mt*2+ct)*4
            o = PO + (mt//2)*4 + (mt%2)*2
            a(f'v_cvt_pk_bf16_f32 v{o}, v{acc}, v{acc+1}')
            a(f'v_cvt_pk_bf16_f32 v{o+1}, v{acc+2}, v{acc+3}')
        a(f'v_mov_b32 v{PO+6}, 0'); a(f'v_mov_b32 v{PO+7}, 0')
    a(f'''
    v_lshrrev_b32 v18, 2, v3
    v_add_u32 v18, v18, v17
    v_mul_u32_u24 v18, {RSV}, v18
    v_and_b32 v19, 3, v3
    v_lshlrev_b32 v19, 3, v19
    v_add_u32 v18, v18, v19
    v_add_u32 v18, s12, v18
    v_lshlrev_b32 v19, 13, v3
    v_lshlrev_b32 v20, 3, v4
    v_add_u32 v19, v19, v20
    s_add_u32 s17, s8, {WS_OX}
    v_mov_b32 v46, 0
    v_mov_b32 v47, 0
    s_waitcnt lgkmcnt(0)
    ''')
    for met in range(16):
        a(f'ds_read_b64_tr_b16 v[40:41], v18 offset:{met*32}')
        a(f'ds_read_b64_tr_b16 v[42:43], v18 offset:{16*RSV + met*32}')
        a(f'ds_read_b64_tr_b16 v[44:45], v18 offset:{32*RSV + met*32}')
        for r in range(8): a(f'v_mov_b32 v{48+r}, 0')
        a('s_waitcnt lgkmcnt(0)')
        for ct in range(2):
            a(f'v_mfma_f32_16x16x32_bf16 v[{48+4*ct}:{51+4*ct}], v[40:43], v[{152+ct*8}:{155+ct*8}], v[{48+4*ct}:{51+4*ct}]')
            a(f'v_mfma_f32_16x16x32_bf16 v[{48+4*ct}:{51+4*ct}], v[44:47], v[{156+ct*8}:{159+ct*8}], v[{48+4*ct}:{51+4*ct}]')
        a('s_nop 7'); a('s_nop 1')
        for ct in range(2):
            a(f'v_cvt_pk_bf16_f32 v56, v{48+4*ct}, v{49+4*ct}')
            a(f'v_cvt_pk_bf16_f32 v57, v{50+4*ct}, v{51+4*ct}')
            a(f's_add_u32 s18, s17, {ct*16*8192}')
            a(f'buffer_store_dwordx2 v[56:57], v19, s[48:51], s18 offen offset:{met*32}')
            a('s_nop 0')

RSK = 528
KVBUF = 2 * 32 * RSK
def emit_flash(a, sT='s2'):
    a(f'''
    v_and_b32 v1, 63, v0
    v_lshrrev_b32 v2, 6, v0
    s_nop 1
    v_readfirstlane_b32 s3, v2
    v_and_b32 v3, 15, v1
    v_lshrrev_b32 v4, 4, v1
    s_lshr_b32 s4, {sT}, 4
    s_sub_u32 s4, 15, s4                 ; qt
    s_and_b32 s6, {sT}, 15
    s_lshl_b32 s7, s6, 9                 ; h*512
    v_xor_b32 v5, 16, v1
    v_lshlrev_b32 v5, 2, v5
    v_xor_b32 v6, 32, v1
    v_lshlrev_b32 v6, 2, v6
    v_lshlrev_b32 v7, 13, v3
    v_lshlrev_b32 v8, 4, v4
    v_add_u32 v7, v7, v8                 ; i*8192 + g*16
    s_lshl_b32 s8, s4, 20                ; qt*128*8192
    s_lshl_b32 s9, s3, 18                ; w*32*8192
    s_add_u32 s8, s8, s9
    s_add_u32 s8, s8, s7
    v_lshrrev_b32 v9, 5, v0
    v_and_b32 v10, 31, v0
    v_lshlrev_b32 v10, 4, v10
    v_lshlrev_b32 v11, 13, v9
    v_add_u32 v11, v11, v10
    v_mul_u32_u24 v12, {RSK}, v9
    v_add_u32 v12, v12, v10
    v_mul_u32_u24 v13, {RSK}, v3
    v_add_u32 v13, v13, v8
    v_lshlrev_b32 v17, 2, v4
    v_lshrrev_b32 v14, 2, v3
    v_add_u32 v14, v14, v17
    v_mul_u32_u24 v14, {RSK}, v14
    v_and_b32 v15, 3, v3
    v_lshlrev_b32 v15, 3, v15
    v_add_u32 v14, v14, v15
    v_add_u32 v14, {32*RSK}, v14
    s_lshl_b32 s10, s4, 7
    s_lshl_b32 s11, s3, 5
    s_add_u32 s10, s10, s11
    v_add_u32 v15, s10, v3
    v_sub_u32 v15, v15, v17
    s_add_u32 s12, s4, 1
    s_lshl_b32 s12, s12, 2               ; nkt
    s_lshl_b32 s13, s4, 2
    ''')
    for ct in range(2):
        a(f's_add_u32 s14, s8, {WS_BQ + ct*16*8192}')
        for ks in range(8):
            a(f'buffer_load_dwordx4 v[{64+ks*4}:{64+ks*4+3}], v7, s[48:51], s14 offen offset:{ks*64}')
        a('s_waitcnt vmcnt(0)')
        for r in range(32):
            a(f'v_accvgpr_write_b32 a{ct*32+r}, v{64+r}')
    for r in range(128): a(f'v_mov_b32 v{128+r}, 0')
    a('s_mov_b32 s15, 0xff800000')
    a('v_mov_b32 v120, s15'); a('v_mov_b32 v121, s15'); a('v_mov_b32 v122, 0'); a('v_mov_b32 v123, 0')
    STG = 64
    sg = lambda b: f'a[{b}:{b+3}]'
    def issue(skt):
        a(f's_lshl_b32 s16, {skt}, 18')
        a('s_add_u32 s16, s16, s7')
        for u in range(4):
            a(f's_add_u32 s17, s16, {WS_BK + u*8*8192}')
            a(f'buffer_load_dwordx4 {sg(STG+4*u)}, v11, s[48:51], s17 offen')
        for u in range(4):
            a(f's_add_u32 s17, s16, {WS_BV + u*8*8192}')
            a(f'buffer_load_dwordx4 {sg(STG+16+4*u)}, v11, s[48:51], s17 offen')
    def wr(buf):
        for u in range(4):
            a(f'ds_write_b128 v12, {sg(STG+4*u)} offset:{buf + u*8*RSK}')
        for u in range(4):
            a(f'ds_write_b128 v12, {sg(STG+16+4*u)} offset:{buf + 32*RSK + u*8*RSK}')
    a('s_mov_b32 s18, 0')
    issue('s18')
    a('s_waitcnt vmcnt(0)')
    wr(0)
    a('s_waitcnt lgkmcnt(0)')
    a('s_barrier')
    loop = a.label('fl'); done = a.label('fdone')
    a(f'{loop}:')
    S = 96
    for par in range(2):
        buf = par*KVBUF; nbuf = (1-par)*KVBUF
        nl = a.label('fnl')
        a('s_add_u32 s19, s18, 1')
        a('s_cmp_ge_u32 s19, s12')
        a(f's_cbranch_scc1 {nl}')
        issue('s19')
        a(f'{nl}:')
        for r in range(16): a(f'v_mov_b32 v{S+r}, 0')
        for ks in range(8):
            for mt in range(2):
                a(f'ds_read_b128 v[{32+(ks*2+mt)*4}:{35+(ks*2+mt)*4}], v13 offset:{buf + mt*16*RSK + ks*64}')
        for ks in range(8):
            a(f's_waitcnt lgkmcnt({min(15, 14-2*ks)})')
            for mt in range(2):
                for ct in range(2):
                    acc = S + (mt*2+ct)*4
                    a(f'v_mfma_f32_16x16x32_bf16 v[{acc}:{acc+3}], v[{32+(ks*2+mt)*4}:{35+(ks*2+mt)*4}], a[{ct*32+ks*4}:{ct*32+ks*4+3}], v[{acc}:{acc+3}]')
        for met in range(16):
            a(f'ds_read_b64_tr_b16 v[{32+4*met}:{33+4*met}], v14 offset:{buf + met*32}')
            a(f'ds_read_b64_tr_b16 v[{34+4*met}:{35+4*met}], v14 offset:{buf + 16*RSK + met*32}')
        a('s_nop 7'); a('s_nop 1')
        a('s_mov_b32 s20, 0x3db8aa3b')
        for r in range(0,16,2):
            a(f'v_cvt_pk_bf16_f32 v124, v{S+r}, v{S+r+1}')
            a(f'v_lshlrev_b32 v{S+r}, 16, v124')
            a(f'v_and_b32 v{S+r+1}, 0xffff0000, v124')
        for r in range(16): a(f'v_mul_f32 v{S+r}, s20, v{S+r}')
        nm = a.label('nomask')
        a('s_cmp_lt_u32 s18, s13')
        a(f's_cbranch_scc1 {nm}')
        a('s_lshl_b32 s21, s18, 5')
        a('v_mov_b32 v125, s15')
        for mt in range(2):
            for ct in range(2):
                for r in range(4):
                    a(f's_add_u32 s22, s21, {16*mt + r - 16*ct}')
                    a(f'v_cmp_le_i32 vcc, s22, v15')
                    a('s_nop 1')
                    acc = S + (mt*2+ct)*4 + r
                    a(f'v_cndmask_b32 v{acc}, v125, v{acc}, vcc')
        a(f'{nm}:')
        for ct in range(2):
            regs = [S + (mt*2+ct)*4 + r for mt in range(2) for r in range(4)]
            a(f'v_max3_f32 v126, v{regs[0]}, v{regs[1]}, v{regs[2]}')
            a(f'v_max3_f32 v126, v126, v{regs[3]}, v{regs[4]}')
            a(f'v_max3_f32 v126, v126, v{regs[5]}, v{regs[6]}')
            a(f'v_max_f32 v126, v126, v{regs[7]}')
            a('ds_bpermute_b32 v127, v5, v126'); a('s_waitcnt lgkmcnt(0)'); a('v_max_f32 v126, v126, v127')
            a('ds_bpermute_b32 v127, v6, v126'); a('s_waitcnt lgkmcnt(0)'); a('v_max_f32 v126, v126, v127')
            a(f'v_max_f32 v126, v126, v{120+ct}')
            a(f'v_sub_f32 v127, v{120+ct}, v126')
            a('v_exp_f32 v127, v127')
            a(f'v_mov_b32 v{120+ct}, v126')
            for rg in regs:
                a(f'v_sub_f32 v{rg}, v{rg}, v126'); a(f'v_exp_f32 v{rg}, v{rg}')
            a('s_nop 0')
            a(f'v_mul_f32 v{122+ct}, v{122+ct}, v127')
            for rg in regs: a(f'v_add_f32 v{122+ct}, v{122+ct}, v{rg}')
            nr = a.label('nors')
            a('v_cmp_neq_f32 vcc, 1.0, v127')
            a(f's_cbranch_vccz {nr}')
            for met in range(16):
                for r in range(4):
                    o = 128 + (met*2+ct)*4 + r
                    a(f'v_mul_f32 v{o}, v{o}, v127')
            a(f'{nr}:')
            for mt in range(2):
                a(f'v_cvt_pk_bf16_f32 v{112+ct*4+mt*2}, v{regs[mt*4]}, v{regs[mt*4+1]}')
                a(f'v_cvt_pk_bf16_f32 v{113+ct*4+mt*2}, v{regs[mt*4+2]}, v{regs[mt*4+3]}')
        a('s_waitcnt lgkmcnt(0)')
        for met in range(16):
            for ct in range(2):
                o = 128 + (met*2+ct)*4
                a(f'v_mfma_f32_16x16x32_bf16 v[{o}:{o+3}], v[{32+4*met}:{35+4*met}], v[{112+ct*4}:{115+ct*4}], v[{o}:{o+3}]')
        a('s_waitcnt vmcnt(0)')
        wr(nbuf)
        a('s_waitcnt lgkmcnt(0)')
        a('s_barrier')
        a('s_add_u32 s18, s18, 1')
        a('s_cmp_ge_u32 s18, s12')
        a(f's_cbranch_scc1 {done}')
    a(f's_branch {loop}')
    a(f'{done}:')
    a('s_nop 7'); a('s_nop 1')
    a(f'''
    v_lshlrev_b32 v19, 13, v3
    v_lshlrev_b32 v20, 3, v4
    v_add_u32 v19, v19, v20
    ''')
    for ct in range(2):
        a(f'ds_bpermute_b32 v36, v5, v{122+ct}'); a('s_waitcnt lgkmcnt(0)'); a(f'v_add_f32 v{122+ct}, v{122+ct}, v36')
        a(f'ds_bpermute_b32 v36, v6, v{122+ct}'); a('s_waitcnt lgkmcnt(0)'); a(f'v_add_f32 v{122+ct}, v{122+ct}, v36')
        a(f'v_rcp_f32 v{122+ct}, v{122+ct}')
        a('s_nop 0')
        a(f's_add_u32 s14, s8, {WS_CTX + ct*16*8192}')
        for met in range(16):
            o = 128 + (met*2+ct)*4
            for r in range(4): a(f'v_mul_f32 v{o+r}, v{o+r}, v{122+ct}')
            a(f'v_cvt_pk_bf16_f32 v56, v{o}, v{o+1}')
            a(f'v_cvt_pk_bf16_f32 v57, v{o+2}, v{o+3}')
            a(f'buffer_store_dwordx2 v[56:57], v19, s[48:51], s14 offen offset:{met*32}')
            a('s_nop 0')
```

```python
from asmlib import *

M = 1 << 20
DEBUG = False
WS_QX=0; WS_KX=16*M; WS_VX=32*M; WS_BQ=48*M; WS_BK=64*M; WS_BV=80*M; WS_OX=96*M; WS_CTX=112*M
WS_WVO=128*M; WS_MEM=136*M; WS_KM=137*M; WS_VM=141*M; WS_MB=146*M; WS_PB=148*M
MB_STRIDE=16384; PB_STRIDE=32768
RSM = 912
LDS_WF = 0
LDS_MEM = 114688
LDS_RED = LDS_MEM + 48*RSM
LDS_CHAIN = 163840

def P(i): return 16+2*i

def bperm_xor(a, dst, src, vaddr):
    a(f'ds_bpermute_b32 {dst}, {vaddr}, {src}')

def emit_chain(a, s_first, s_last):
    LA = a.label('roleB')
    a(f'''
    v_and_b32 v1, 63, v0                 ; lane
    v_lshrrev_b32 v2, 6, v0
    s_nop 1
    v_readfirstlane_b32 s3, v2
    v_and_b32 v3, 15, v1                 ; i
    v_lshrrev_b32 v4, 4, v1              ; g
    s_mov_b32 s48, s{P(15)}
    s_mov_b32 s49, s{P(15)+1}
    s_mov_b32 s50, 0x7fffffff
    s_mov_b32 s51, 0x00020000
    v_xor_b32 v5, 16, v1
    v_lshlrev_b32 v5, 2, v5
    v_xor_b32 v6, 32, v1
    v_lshlrev_b32 v6, 2, v6
    v_lshrrev_b32 v7, 3, v1
    v_mul_u32_u24 v7, {RSM}, v7
    v_and_b32 v8, 7, v1
    v_lshlrev_b32 v8, 2, v8
    v_add_u32 v7, v7, v8
    s_lshl_b32 s4, s3, 5
    s_add_u32 s4, s4, {LDS_MEM}
    v_add_u32 v7, s4, v7
    v_lshlrev_b32 v8, 3, v0
    s_mov_b32 s70, 0
    s_mov_b32 s71, 0
    s_cmp_ge_u32 s2, 16
    s_cbranch_scc1 {LA}
    ''')
    emit_roleA(a, s_first, s_last)
    a('s_branch L_chain_end')
    a(f'{LA}:')
    emit_roleB(a, s_first, s_last)
    a('L_chain_end:')

def emit_poll_mem(a, sStep):
    lp = a.label('pollm')
    a(f's_mul_i32 s62, {sStep}, {MB_STRIDE}')
    a(f's_add_u32 s62, s62, {WS_MB}')
    a(f's_add_u32 s63, {sStep}, 1')
    cp = a.label('cheapm')
    a('v_min_u32 v46, 27, v1')
    a('v_lshlrev_b32 v46, 9, v46')
    a('v_add_u32 v46, 504, v46')
    a(f'{cp}:')
    a('buffer_load_dwordx2 v[32:33], v46, s[48:51], s62 offen sc1')
    a('s_waitcnt vmcnt(0)')
    a('v_cmp_ne_u32 vcc, s63, v33')
    a(f's_cbranch_vccnz {cp}')
    a(f'{lp}:')
    for u in range(7):
        a(f's_add_u32 s61, s62, {u*2048}')
        a(f'buffer_load_dwordx2 v[{32+2*u}:{33+2*u}], v8, s[48:51], s61 offen sc1')
    a('s_waitcnt vmcnt(0)')
    a('v_xor_b32 v46, s63, v33')
    for u in range(1,7):
        a(f'v_xor_b32 v47, s63, v{33+2*u}')
        a('v_or_b32 v46, v46, v47')
    a('v_cmp_ne_u32 vcc, 0, v46')
    a(f's_cbranch_vccnz {lp}')
    for u in range(7):
        a(f'ds_write_b32 v7, v{32+2*u} offset:{u*128}')
    a('s_waitcnt lgkmcnt(0)')
    a('s_barrier')

def emit_roleA(a, s_first, s_last):
    STG = 26
    a(f'''
    v_lshrrev_b32 v9, 3, v1
    v_lshlrev_b32 v10, 13, v9            ; row*8192
    v_and_b32 v11, 7, v1
    v_lshlrev_b32 v11, 4, v11
    v_add_u32 v10, v10, v11
    v_mul_u32_u24 v12, 144, v9
    v_add_u32 v12, v12, v11
    s_mul_i32 s4, s3, 4608
    s_add_u32 s4, s4, {LDS_MEM}
    v_add_u32 v12, s4, v12
    v_lshrrev_b32 v13, 2, v3
    v_lshlrev_b32 v14, 3, v4
    v_add_u32 v13, v13, v14
    v_mul_u32_u24 v13, 144, v13
    v_and_b32 v14, 3, v3
    v_lshlrev_b32 v14, 3, v14
    v_add_u32 v13, v13, v14
    v_add_u32 v13, s4, v13
    v_lshlrev_b32 v14, 4, v1
    s_mul_i32 s5, s3, 28672
    v_add_u32 v14, s5, v14
    s_lshl_b32 s6, s2, 9
    s_lshl_b32 s7, s3, 7
    s_add_u32 s6, s6, s7
    ''')
    for mat in range(2):
        pi = 2 if mat == 0 else 3
        a(f'''
        s_mov_b32 s52, s{P(pi)}
        s_mov_b32 s53, s{P(pi)+1}
        s_mov_b32 s54, 0x7fffffff
        s_mov_b32 s55, 0x00020000
        ''')
        B = 6 if mat == 0 else 2
        stbase = -LDS_MEM if mat == 0 else 0
        for k0 in range(0, 14, B):
            kss = list(range(k0, min(14, k0+B)))
            for bi, ks in enumerate(kss):
                for u in range(4):
                    a(f's_add_u32 s8, s6, {ks*32*8192 + u*8*8192}')
                    a(f'buffer_load_dwordx4 v[{STG+16*bi+4*u}:{STG+16*bi+4*u+3}], v10, s[52:55], s8 offen')
            a('s_waitcnt vmcnt(0)')
            for bi, ks in enumerate(kss):
                for u in range(4):
                    a(f'v_add_u32 v15, {stbase + bi*18432 + u*8*144}, v12')
                    a(f'ds_write_b128 v15, v[{STG+16*bi+4*u}:{STG+16*bi+4*u+3}]')
            a('s_waitcnt lgkmcnt(0)')
            for bi, ks in enumerate(kss):
                a(f'v_add_u32 v15, {stbase + bi*18432}, v13')
                for nt in range(4):
                    for hf in range(2):
                        a(f'ds_read_b64_tr_b16 v[{STG+16*bi+4*nt+2*hf}:{STG+16*bi+4*nt+2*hf+1}], v15 offset:{4*hf*144 + nt*32}')
            a('s_waitcnt lgkmcnt(0)')
            a('s_barrier')
            for bi, ks in enumerate(kss):
                for nt in range(4):
                    tile = mat*4 + nt
                    for r in range(4):
                        if tile < 4:
                            a(f'v_accvgpr_write_b32 a{(tile*14+ks)*4+r}, v{STG+16*bi+4*nt+r}')
                        elif tile < 6:
                            a(f'v_mov_b32 v{128+((tile-4)*14+ks)*4+r}, v{STG+16*bi+4*nt+r}')
                    if tile >= 6:
                        a(f'ds_write_b128 v14, v[{STG+16*bi+4*nt}:{STG+16*bi+4*nt+3}] offset:{((tile-6)*14+ks)*1024}')
            a('s_waitcnt lgkmcnt(0)')
    a('s_barrier')
    a(f'''
    v_and_b32 v9, 7, v3
    v_mul_u32_u24 v9, {RSM}, v9
    v_lshlrev_b32 v10, 4, v4
    v_add_u32 v9, v9, v10
    v_add_u32 v9, {LDS_MEM}, v9
    v_lshlrev_b32 v15, 13, v3
    v_lshlrev_b32 v16, 3, v4
    v_add_u32 v15, v15, v16
    v_lshlrev_b32 v16, 2, v1
    v_add_u32 v17, {LDS_MEM+8192}, v16
    s_mul_i32 s4, s3, 3072
    v_add_u32 v16, s4, v17
    v_mul_u32_u24 v18, 20, v3
    v_lshlrev_b32 v19, 1, v4
    v_add_u32 v18, v18, v19
    v_lshlrev_b32 v18, 3, v18
    s_mov_b32 s56, s{P(15)}
    s_mov_b32 s57, s{P(15)+1}
    s_mov_b32 s58, 0x7fffffff
    s_mov_b32 s59, 0x00020000
    s_mov_b32 s9, {s_first}
    ''')
    loop = a.label('aloop')
    a(f'{loop}:')
    KX = 112
    a(f's_lshl_b32 s10, s9, 18')
    a(f's_add_u32 s10, s10, s6')
    a(f's_add_u32 s10, s10, {WS_KX}')
    for mt in range(2):
        a(f's_add_u32 s11, s10, {mt*16*8192}')
        for kk in range(2):
            a(f'buffer_load_dwordx2 v[{KX+(mt*2+kk)*4}:{KX+(mt*2+kk)*4+1}], v15, s[56:59], s11 offen offset:{kk*64}')
            a(f'buffer_load_dwordx2 v[{KX+(mt*2+kk)*4+2}:{KX+(mt*2+kk)*4+3}], v15, s[56:59], s11 offen offset:{kk*64+32}')
    emit_poll_mem(a, 's9')
    MF = 56
    ACC = 24
    for ks in range(14):
        a(f'ds_read_b128 v[{MF+4*ks}:{MF+4*ks+3}], v9 offset:{ks*64}')
    for r in range(32):
        a(f'v_mov_b32 v{ACC+r}, 0')
    a('s_waitcnt lgkmcnt(0)')
    WT = 240
    for t2 in range(2):
        a(f'ds_read_b128 v[{WT+4*t2}:{WT+4*t2+3}], v14 offset:{(t2*14)*1024}')
    for ks in range(14):
        wb = WT + 8*(ks%2); wn = WT + 8*((ks+1)%2)
        if ks < 13:
            for t2 in range(2):
                a(f'ds_read_b128 v[{wn+4*t2}:{wn+4*t2+3}], v14 offset:{(t2*14+ks+1)*1024}')
        for tile in range(6):
            src = f'a[{(tile*14+ks)*4}:{(tile*14+ks)*4+3}]' if tile < 4 else f'v[{128+((tile-4)*14+ks)*4}:{128+((tile-4)*14+ks)*4+3}]'
            a(f'v_mfma_f32_16x16x32_bf16 v[{ACC+4*tile}:{ACC+4*tile+3}], {src}, v[{MF+4*ks}:{MF+4*ks+3}], v[{ACC+4*tile}:{ACC+4*tile+3}]')
        a(f's_waitcnt lgkmcnt({2 if ks < 13 else 0})')
        for t2 in range(2):
            tile = 6+t2
            a(f'v_mfma_f32_16x16x32_bf16 v[{ACC+4*tile}:{ACC+4*tile+3}], v[{wb+4*t2}:{wb+4*t2+3}], v[{MF+4*ks}:{MF+4*ks+3}], v[{ACC+4*tile}:{ACC+4*tile+3}]')
    a('s_nop 7')
    a('s_nop 1')
    if DEBUG:
        dl = a.label('dbgskip')
        a('s_cmp_lg_u32 s9, 0')
        a(f's_cbranch_scc1 {dl}')
        a('s_cmp_lg_u32 s2, 0')
        a(f's_cbranch_scc1 {dl}')
        a('v_lshlrev_b32 v100, 7, v0')
        a('v_lshrrev_b32 v101, 4, v0')
        a('v_mul_u32_u24 v101, 1920, v101')
        a('v_add_u32 v100, v100, v101')
        a(f's_mov_b32 s12, {200*M}')
        for r in range(0,32,4):
            a(f'buffer_store_dwordx4 v[{ACC+r}:{ACC+r+3}], v100, s[56:59], s12 offen offset:{r*4}')
        a(f'buffer_store_dwordx4 v[56:59], v100, s[56:59], s12 offen offset:{1<<11}')
        for r in range(4): a(f'v_accvgpr_read_b32 v{104+r}, a{r}')
        a('s_nop 1')
        a(f'buffer_store_dwordx4 v[104:107], v100, s[56:59], s12 offen offset:{(1<<11)+16}')
        a('s_waitcnt vmcnt(0)')
        a(f'{dl}:')
    QP = 56; KP = 64
    for kk in range(2):
        for half in range(2):
            t = 2*kk + half
            a(f'v_cvt_pk_bf16_f32 v{QP+4*kk+2*half}, v{ACC+4*t}, v{ACC+4*t+1}')
            a(f'v_cvt_pk_bf16_f32 v{QP+4*kk+2*half+1}, v{ACC+4*t+2}, v{ACC+4*t+3}')
            t = 4 + 2*kk + half
            a(f'v_cvt_pk_bf16_f32 v{KP+4*kk+2*half}, v{ACC+4*t}, v{ACC+4*t+1}')
            a(f'v_cvt_pk_bf16_f32 v{KP+4*kk+2*half+1}, v{ACC+4*t+2}, v{ACC+4*t+3}')
    SP = 72
    for r in range(12):
        a(f'v_mov_b32 v{SP+r}, 0')
    a('s_waitcnt vmcnt(0)')
    a('s_nop 1')
    for kk in range(2):
        a(f'v_mfma_f32_16x16x32_bf16 v[{SP}:{SP+3}], v[{KP+4*kk}:{KP+4*kk+3}], v[{QP+4*kk}:{QP+4*kk+3}], v[{SP}:{SP+3}]')
        for mt in range(2):
            o = KX+(mt*2+kk)*4
            a(f'v_mfma_f32_16x16x32_bf16 v[{SP+4+4*mt}:{SP+4+4*mt+3}], v[{o}:{o+3}], v[{QP+4*kk}:{QP+4*kk+3}], v[{SP+4+4*mt}:{SP+4+4*mt+3}]')
    a('s_nop 7')
    a('s_nop 1')
    a('v_mul_u32_u24 v20, 48, v1')
    a('v_add_u32 v20, s4, v20')
    a(f'v_add_u32 v20, {LDS_MEM+8192}, v20')
    for r in range(3):
        a(f'ds_write_b128 v20, v[{SP+4*r}:{SP+4*r+3}] offset:{r*16}')
    a('s_waitcnt lgkmcnt(0)')
    a('s_barrier')
    skip = a.label('nopub')
    a('s_cmp_lg_u32 s3, 0')
    a(f's_cbranch_scc1 {skip}')
    T0 = 24
    for w in range(4):
        for r in range(3):
            a(f'ds_read_b128 v[{T0+12*w+4*r}:{T0+12*w+4*r+3}], v20 offset:{w*3072 + r*16}')
    a('s_waitcnt lgkmcnt(0)')
    for r in range(12):
        a(f'v_add_f32 v{SP+r}, v{T0+r}, v{T0+12+r}')
        a(f'v_add_f32 v{T0+24+r}, v{T0+24+r}, v{T0+36+r}')
    for r in range(12):
        a(f'v_add_f32 v{SP+r}, v{SP+r}, v{T0+24+r}')
    for r in range(0,12,2):
        a(f'v_cvt_pk_bf16_f32 v{T0}, v{SP+r}, v{SP+r+1}')
        a(f'v_lshlrev_b32 v{SP+r}, 16, v{T0}')
        a(f'v_and_b32 v{SP+r+1}, 0xffff0000, v{T0}')
    for r in range(12):
        a(f'v_mul_f32 v{SP+r}, 0x3d800000, v{SP+r}')
    a('v_cmp_gt_u32 vcc, 2, v4')
    a('s_mov_b32 s12, 0xff800000')
    a('v_mov_b32 v96, s12')
    for r in range(4):
        a(f'v_cndmask_b32 v{SP+r}, v96, v{SP+r}, vcc')
    a(f'v_max3_f32 v97, v{SP}, v{SP+1}, v{SP+2}')
    for r in range(3,11,2):
        a(f'v_max3_f32 v97, v97, v{SP+r}, v{SP+r+1}')
    a(f'v_max_f32 v97, v97, v{SP+11}')
    a('ds_bpermute_b32 v98, v5, v97')
    a('s_waitcnt lgkmcnt(0)')
    a('v_max_f32 v97, v97, v98')
    a('ds_bpermute_b32 v98, v6, v97')
    a('s_waitcnt lgkmcnt(0)')
    a('v_max_f32 v97, v97, v98')
    a('s_mov_b32 s12, 0x3fb8aa3b')
    for r in range(12):
        a(f'v_sub_f32 v{SP+r}, v{SP+r}, v97')
        a(f'v_mul_f32 v{SP+r}, s12, v{SP+r}')
        a(f'v_exp_f32 v{SP+r}, v{SP+r}')
    a('s_nop 0')
    a(f'v_add_f32 v98, v{SP}, v{SP+1}')
    for r in range(2,12):
        a(f'v_add_f32 v98, v98, v{SP+r}')
    a('ds_bpermute_b32 v99, v5, v98')
    a('s_waitcnt lgkmcnt(0)')
    a('v_add_f32 v98, v98, v99')
    a('ds_bpermute_b32 v99, v6, v98')
    a('s_waitcnt lgkmcnt(0)')
    a('v_add_f32 v98, v98, v99')
    a('v_rcp_f32 v98, v98')
    a('s_nop 0')
    for r in range(12):
        a(f'v_mul_f32 v{SP+r}, v{SP+r}, v98')
    a(f's_mul_i32 s12, s9, {PB_STRIDE}')
    a(f's_mul_i32 s13, s2, 1280')
    a(f's_add_u32 s12, s12, s13')
    a(f's_add_u32 s12, s12, {WS_PB}')
    a('s_add_u32 s13, s9, 1')
    a('v_cmp_gt_u32 vcc, 8, v3')
    a('s_and_saveexec_b64 s[14:15], vcc')
    for mt in range(3):
        if mt == 0:
            a('v_cmp_gt_u32 vcc, 2, v4')
            a('s_and_saveexec_b64 s[60:61], vcc')
        for hf in range(2):
            a(f'v_cvt_pk_bf16_f32 v100, v{SP+4*mt+2*hf}, v{SP+4*mt+2*hf+1}')
            a('v_mov_b32 v101, s13')
            a(f'buffer_store_dwordx2 v[100:101], v18, s[56:59], s12 offen offset:{([0,4,12][mt]+hf)*8} sc1')
        if mt == 0:
            a('s_mov_b64 exec, s[60:61]')
    a('s_mov_b64 exec, s[14:15]')
    a(f'{skip}:')
    a('s_add_u32 s9, s9, 1')
    a(f's_cmp_lt_u32 s9, {s_last}')
    a(f's_cbranch_scc1 {loop}')

def emit_roleB(a, s_first, s_last):
    a(f'''
    ; ---- role B
    s_sub_u32 s20, s2, 16                ; c
    v_lshrrev_b32 v9, 1, v1
    v_mul_u32_u24 v10, 896, v9
    v_and_b32 v11, 1, v1
    v_lshlrev_b32 v11, 4, v11
    v_add_u32 v10, v10, v11
    v_mul_u32_u24 v12, 48, v9
    v_add_u32 v12, v12, v11
    s_mul_i32 s4, s3, 21504
    v_add_u32 v12, s4, v12
    v_lshrrev_b32 v13, 2, v3
    v_lshlrev_b32 v14, 3, v4
    v_add_u32 v13, v13, v14
    v_mul_u32_u24 v13, 48, v13
    v_and_b32 v14, 3, v3
    v_lshlrev_b32 v14, 3, v14
    v_add_u32 v13, v13, v14
    v_add_u32 v13, s4, v13
    s_mul_i32 s6, s3, {4*401408}
    s_lshl_b32 s7, s20, 5
    s_add_u32 s6, s6, s7
    s_add_u32 s6, s6, {WS_WVO}
    ''')
    for hh in range(4):
        for ks in range(14):
            a(f's_add_u32 s7, s6, {hh*401408 + ks*32*896}')
            a(f'buffer_load_dwordx4 v[{32+4*ks}:{35+4*ks}], v10, s[48:51], s7 offen')
        a('s_waitcnt vmcnt(0)')
        for ks in range(14):
            a(f'ds_write_b128 v12, v[{32+4*ks}:{35+4*ks}] offset:{ks*1536}')
        a('s_waitcnt lgkmcnt(0)')
        for ks in range(14):
            for hf in range(2):
                a(f'ds_read_b64_tr_b16 v[{32+4*ks+2*hf}:{33+4*ks+2*hf}], v13 offset:{ks*1536 + 4*hf*48}')
        a('s_waitcnt lgkmcnt(0)')
        for ks in range(14):
            for r in range(4):
                a(f'v_accvgpr_write_b32 a{(hh*14+ks)*4+r}, v{32+4*ks+r}')
    a('s_barrier')
    a(f'''
    v_mov_b32 v26, 0
    v_mov_b32 v27, 0
    v_mov_b32 v28, 0
    v_mov_b32 v29, 0
    v_lshlrev_b32 v9, 5, v0
    v_add_u32 v9, {LDS_MEM + 40*RSM}, v9
    v_cmp_gt_u32 vcc, 228, v0
    s_and_saveexec_b64 s[14:15], vcc
    ds_write_b128 v9, v[26:29]
    ds_write_b128 v9, v[26:29] offset:16
    s_mov_b64 exec, s[14:15]
    ; x rows load: 32 rows * 896 B = 1792 chunks of 16B = 7 per thread: chunk = t + 256u : row = chunk/56, cc = chunk%56
    ''')
    XV = 226
    for u in range(7):
        a(f'v_add_u32 v9, {256*u}, v0')
        a('s_mov_b32 s12, 0x4924925')
        a('v_mul_hi_u32 v10, v9, s12')
        a('v_mul_u32_u24 v11, 56, v10')
        a('v_sub_u32 v11, v9, v11')
        a(f'v_mul_u32_u24 v12, {RSM}, v10')
        a('v_lshlrev_b32 v11, 4, v11')
        a('v_add_u32 v12, v12, v11')
        a(f'v_add_u32 v{XV+u}, {LDS_MEM + 8*RSM}, v12')
    a(f'''
    v_lshlrev_b32 v233, 4, v0
    s_mov_b32 s52, s{P(0)}
    s_mov_b32 s53, s{P(0)+1}
    s_mov_b32 s54, 0x7fffffff
    s_mov_b32 s55, 0x00020000
    v_mul_u32_u24 v9, {RSM}, v3
    v_lshlrev_b32 v10, 4, v4
    v_add_u32 v9, v9, v10
    v_add_u32 v9, {LDS_MEM}, v9
    v_and_b32 v15, 7, v3
    v_mul_u32_u24 v15, 20, v15
    v_lshlrev_b32 v16, 1, v4
    v_add_u32 v15, v15, v16
    v_lshlrev_b32 v15, 3, v15
    v_and_b32 v21, 7, v3
    v_mul_u32_u24 v21, 20, v21
    v_and_b32 v22, 1, v4
    v_lshlrev_b32 v22, 1, v22
    v_add_u32 v21, v21, v22
    v_lshlrev_b32 v21, 3, v21
    v_lshlrev_b32 v16, 2, v1
    v_add_u32 v17, {LDS_RED}, v16
    s_lshl_b32 s4, s3, 10
    v_add_u32 v16, s4, v17
    v_lshlrev_b32 v18, 3, v3
    v_lshlrev_b32 v19, 1, v4
    v_add_u32 v18, v18, v19
    v_lshlrev_b32 v18, 3, v18
    v_mul_u32_u24 v19, 896, v3
    v_lshlrev_b32 v20, 3, v4
    v_add_u32 v19, v19, v20
    s_mov_b32 s9, {s_first}
    ''')
    loop = a.label('bloop')
    a('s_mul_i32 s10, s9, 28672')
    for u in range(7):
        a(f's_add_u32 s11, s10, {u*4096}')
        a(f'buffer_load_dwordx4 v[{196+4*u}:{199+4*u}], v233, s[52:55], s11 offen')
    a('s_waitcnt vmcnt(0)')
    a(f'{loop}:')
    for u in range(7):
        a(f'ds_write_b128 v{XV+u}, v[{196+4*u}:{199+4*u}]')
    emit_poll_mem(a, 's9')
    TA = 32
    HF = 80
    for r in range(48):
        a(f'v_mov_b32 v{TA+r}, 0')
    for ks in range(14):
        for mt in range(3):
            a(f'ds_read_b128 v[{HF+4*mt}:{HF+4*mt+3}], v9 offset:{mt*16*RSM + ks*64}')
        a('s_waitcnt lgkmcnt(0)')
        for hh in range(4):
            for mt in range(3):
                acc = TA + (hh*3+mt)*4
                a(f'v_mfma_f32_16x16x32_bf16 v[{acc}:{acc+3}], v[{HF+4*mt}:{HF+4*mt+3}], a[{(hh*14+ks)*4}:{(hh*14+ks)*4+3}], v[{acc}:{acc+3}]')
    a('s_nop 7')
    a('s_nop 1')
    a('s_add_u32 s10, s9, 1')
    a('s_min_u32 s10, s10, 63')
    a('s_mul_i32 s10, s10, 28672')
    for u in range(7):
        a(f's_add_u32 s11, s10, {u*4096}')
        a(f'buffer_load_dwordx4 v[{196+4*u}:{199+4*u}], v233, s[52:55], s11 offen')
    TP = 100
    for hh in range(4):
        for mt in range(3):
            acc = TA + (hh*3+mt)*4
            o = TP + hh*8 + (mt//2)*4 + (mt%2)*2
            a(f'v_cvt_pk_bf16_f32 v{o}, v{acc}, v{acc+1}')
            a(f'v_cvt_pk_bf16_f32 v{o+1}, v{acc+2}, v{acc+3}')
        a(f'v_mov_b32 v{TP+hh*8+6}, 0')
        a(f'v_mov_b32 v{TP+hh*8+7}, 0')
    PP = 132
    lp = a.label('pollp')
    a(f's_mul_i32 s12, s9, {PB_STRIDE}')
    a(f's_mul_i32 s13, s3, {4*1280}')
    a('s_add_u32 s12, s12, s13')
    a(f's_add_u32 s12, s12, {WS_PB}')
    a('s_add_u32 s13, s9, 1')
    cp = a.label('cheapp')
    a('v_and_b32 v24, 3, v1')
    a('v_mul_u32_u24 v24, 1280, v24')
    a('v_add_u32 v24, 1272, v24')
    a(f'{cp}:')
    a('buffer_load_dwordx2 v[26:27], v24, s[48:51], s12 offen sc1')
    a('s_waitcnt vmcnt(0)')
    a('v_cmp_ne_u32 vcc, s13, v27')
    a(f's_cbranch_vccnz {cp}')
    a(f'{lp}:')
    for hh in range(4):
        for q in range(6):
            mt, hf = q//2, q%2
            a(f'buffer_load_dwordx2 v[{PP+(hh*6+q)*2}:{PP+(hh*6+q)*2+1}], {"v21" if mt==2 else "v15"}, s[48:51], s12 offen offset:{hh*1280 + (8*mt+hf)*8} sc1')
    a('s_waitcnt vmcnt(0)')
    a(f'v_xor_b32 v24, s13, v{PP+1}')
    for k in range(1,24):
        a(f'v_xor_b32 v25, s13, v{PP+2*k+1}')
        a('v_or_b32 v24, v24, v25')
    a('v_cmp_ne_u32 vcc, 0, v24')
    a(f's_cbranch_vccnz {lp}')
    PB2 = 40
    for hh in range(4):
        for q in range(6):
            mt, hf = q//2, q%2
            a(f'v_mov_b32 v{PB2 + hh*8 + (mt//2)*4 + (mt%2)*2 + hf}, v{PP+(hh*6+q)*2}')
        a(f'v_mov_b32 v{PB2+hh*8+6}, 0')
        a(f'v_mov_b32 v{PB2+hh*8+7}, 0')
    for r in range(4):
        a(f'v_mov_b32 v{TA+r}, 0')
    a('s_nop 1')
    for hh in range(4):
        for k2 in range(2):
            a(f'v_mfma_f32_16x16x32_bf16 v[{TA}:{TA+3}], v[{TP+hh*8+k2*4}:{TP+hh*8+k2*4+3}], v[{PB2+hh*8+k2*4}:{PB2+hh*8+k2*4+3}], v[{TA}:{TA+3}]')
    a('s_nop 7')
    a('s_nop 1')
    for r in range(4):
        a(f'ds_write_b32 v16, v{TA+r} offset:{r*256}')
    a('s_waitcnt lgkmcnt(0)')
    a('s_barrier')
    skip = a.label('nopubB')
    a('s_cmp_lg_u32 s3, 0')
    a(f's_cbranch_scc1 {skip}')
    for w in range(4):
        for r in range(4):
            a(f'ds_read_b32 v{TA+4*w+r}, v17 offset:{w*1024 + r*256}')
    a('s_waitcnt lgkmcnt(0)')
    for r in range(4):
        a(f'v_add_f32 v{TA+r}, v{TA+r}, v{TA+4+r}')
        a(f'v_add_f32 v{TA+8+r}, v{TA+8+r}, v{TA+12+r}')
        a(f'v_add_f32 v{TA+r}, v{TA+r}, v{TA+8+r}')
    a(f'v_cvt_pk_bf16_f32 v{TA+16}, v{TA}, v{TA+1}')
    a(f'v_cvt_pk_bf16_f32 v{TA+18}, v{TA+2}, v{TA+3}')
    a('s_add_u32 s13, s9, 2')
    a(f'v_mov_b32 v{TA+17}, s13')
    a(f'v_mov_b32 v{TA+19}, s13')
    a(f'v_mov_b32 v{TA+20}, v{TA+16}')
    a(f'v_mov_b32 v{TA+21}, v{TA+18}')
    a('s_add_u32 s12, s9, 1')
    a(f's_mul_i32 s12, s12, {MB_STRIDE}')
    a('s_lshl_b32 s13, s20, 9')
    a('s_add_u32 s12, s12, s13')
    a(f's_add_u32 s12, s12, {WS_MB}')
    a('s_add_u32 s13, s9, 1')
    a('s_mul_i32 s13, s13, 7168')
    a('s_lshl_b32 s21, s20, 5')
    a('s_add_u32 s13, s13, s21')
    a(f's_add_u32 s13, s13, {WS_MEM}')
    a('v_cmp_gt_u32 vcc, 8, v3')
    a('s_and_saveexec_b64 s[14:15], vcc')
    a(f'buffer_store_dwordx2 v[{TA+16}:{TA+17}], v18, s[48:51], s12 offen sc1')
    a(f'buffer_store_dwordx2 v[{TA+18}:{TA+19}], v18, s[48:51], s12 offen offset:8 sc1')
    a(f'buffer_store_dwordx2 v[{TA+20}:{TA+21}], v19, s[48:51], s13 offen')
    a('s_mov_b64 exec, s[14:15]')
    a(f'{skip}:')
    a('s_barrier')
    a('s_add_u32 s9, s9, 1')
    a(f's_cmp_lt_u32 s9, {s_last}')
    a(f's_cbranch_scc1 {loop}')
```

```python
from asmlib import *
from gemmlib import *
from chainlib import *
from attnlib import *
import sys

def prologue(a):
    a('''
    s_load_dwordx16 s[16:31], s[0:1], 0
    s_load_dwordx16 s[32:47], s[0:1], 64
    s_waitcnt lgkmcnt(0)
    ''')

def k1_prep():
    a = Asm(); name = 'k1_prep_kernel'
    kernel_header(a, name); prologue(a)
    NG = 512; NW = 784; NZ = 64
    a(f'''
    s_cmp_ge_u32 s2, {NG+NW+NZ}
    s_cbranch_scc1 L_k1_end
    s_cmp_ge_u32 s2, {NG+NW}
    s_cbranch_scc1 L_k1_zero
    s_cmp_ge_u32 s2, {NG}
    s_cbranch_scc1 L_k1_wvo
    s_lshr_b32 s3, s2, 9
    s_and_b32 s4, s2, 511
    s_lshr_b32 s5, s4, 5
    s_lshl_b32 s5, s5, 7                ; m0
    s_and_b32 s6, s4, 31
    s_lshl_b32 s6, s6, 7                ; n0
    s_mov_b32 s48, s16
    s_mov_b32 s49, s17
    s_mov_b32 s52, s20
    s_mov_b32 s53, s21
    s_mov_b32 s56, s46
    s_mov_b32 s57, s47
    s_mov_b32 s7, 896
    s_mov_b32 s8, 7
    ''')
    for g,(pa,pb,off,lda,kt) in enumerate([(0,3,WS_KX,896,7)]):
        nxt = a.label('sel')
        a(f's_cmp_lg_u32 s3, {g}')
        a(f's_cbranch_scc1 {nxt}')
        a(f'''
        s_mov_b32 s48, s{P(pa)}
        s_mov_b32 s49, s{P(pa)+1}
        s_mov_b32 s52, s{P(pb)}
        s_mov_b32 s53, s{P(pb)+1}
        s_add_u32 s56, s{P(15)}, {off}
        s_addc_u32 s57, s{P(15)+1}, 0
        s_mov_b32 s7, {lda}
        s_mov_b32 s8, {kt}
        ''')
        a(f'{nxt}:')
    a('''
    s_mov_b32 s50, 0x7fffffff
    s_mov_b32 s51, 0x00020000
    s_mov_b32 s54, 0x7fffffff
    s_mov_b32 s55, 0x00020000
    s_mov_b32 s58, 0x7fffffff
    s_mov_b32 s59, 0x00020000
    s_mov_b32 s9, 8192
    ''')
    emit_gemm(a, 128, 128, 48, 52, 56, 's7', 's9', 's9', 's8', 's5', 's6')
    a('s_branch L_k1_end')
    a('L_k1_wvo:')
    a(f'''
    s_sub_u32 s3, s2, {NG}
    s_mul_hi_u32 s4, s3, 0x539782a      ; /49
    s_mul_i32 s5, s4, 49
    s_sub_u32 s5, s3, s5
    s_mul_hi_u32 s6, s5, 0x24924925     ; /7
    s_mul_i32 s7, s6, 7
    s_sub_u32 s7, s5, s7
    s_lshl_b32 s10, s6, 6               ; m0
    s_lshl_b32 s11, s7, 6               ; n0
    s_lshl_b32 s12, s4, 9               ; h*512
    s_add_u32 s48, s{P(4)}, s12
    s_addc_u32 s49, s{P(4)+1}, 0
    s_mul_i32 s12, s4, 229376
    s_add_u32 s52, s{P(5)}, s12
    s_addc_u32 s53, s{P(5)+1}, 0
    s_mul_i32 s12, s4, 401408
    s_add_u32 s12, s12, {WS_WVO}
    s_add_u32 s56, s{P(15)}, s12
    s_addc_u32 s57, s{P(15)+1}, 0
    s_mov_b32 s50, 0x7fffffff
    s_mov_b32 s51, 0x00020000
    s_mov_b32 s54, 0x7fffffff
    s_mov_b32 s55, 0x00020000
    s_mov_b32 s58, 0x7fffffff
    s_mov_b32 s59, 0x00020000
    s_mov_b32 s7, 8192
    s_mov_b32 s9, 896
    s_mov_b32 s8, 4
    ''')
    emit_gemm(a, 64, 64, 48, 52, 56, 's7', 's9', 's9', 's8', 's10', 's11')
    a('s_branch L_k1_end')
    a('L_k1_zero:')
    a(f'''
    s_sub_u32 s3, s2, {NG+NW}
    s_mov_b32 s48, s{P(15)}
    s_mov_b32 s49, s{P(15)+1}
    s_mov_b32 s50, 0x7fffffff
    s_mov_b32 s51, 0x00020000
    s_mov_b32 s52, s{P(1)}
    s_mov_b32 s53, s{P(1)+1}
    s_mov_b32 s54, 7168
    s_mov_b32 s55, 0x00020000
    v_mov_b32 v4, 0
    v_mov_b32 v5, 0
    v_mov_b32 v6, 0
    v_mov_b32 v7, 0
    v_lshlrev_b32 v1, 4, v0
    s_lshl_b32 s4, s3, 16
    s_add_u32 s4, s4, {WS_MB}
    ''')
    for u in range(16):
        if u < 4:
            l2 = a.label('z')
            a(f's_cmp_eq_u32 s3, 0')
            a(f's_cbranch_scc1 {l2}')
        a(f's_add_u32 s5, s4, {u*4096}')
        a('buffer_store_dwordx4 v[4:7], v1, s[48:51], s5 offen')
        if u < 4:
            a(f'{l2}:')
    a(f'''
    s_cmp_lg_u32 s3, 0
    s_cbranch_scc1 L_k1_end
    ''')
    for u in range(7):
        a(f'''
        v_add_u32 v2, {256*u}, v0
        v_lshrrev_b32 v3, 6, v2
        v_and_b32 v8, 63, v2
        v_lshrrev_b32 v9, 3, v8
        v_mul_u32_u24 v9, 896, v9
        v_lshlrev_b32 v3, 5, v3
        v_add_u32 v9, v9, v3
        v_and_b32 v8, 7, v8
        v_lshlrev_b32 v8, 2, v8
        v_add_u32 v9, v9, v8
        buffer_load_dword v10, v9, s[52:55], 0 offen
        v_mov_b32 v11, 1
        v_lshlrev_b32 v2, 3, v2
        s_waitcnt vmcnt(0)
        buffer_store_dwordx2 v[10:11], v2, s[48:51], s4 offen
        s_mov_b32 s5, {WS_MEM}
        buffer_store_dword v10, v9, s[48:51], s5 offen
        ''')
    a('L_k1_end:')
    a('s_endpgm')
    return a, name, 160, f'grid=({NG+NW+NZ},1,1) block=(256,1,1) lds={gemm_lds_bytes(128,128)}'

def k2_chain():
    a = Asm(); name = 'k2_chain_kernel'
    kernel_header(a, name); prologue(a)
    a('s_cmp_ge_u32 s2, 44')
    a('s_cbranch_scc1 L_k2_end')
    emit_chain(a, 0, 63)
    a('L_k2_end:')
    a('s_endpgm')
    return a, name, 512, f'grid=(44,1,1) block=(256,1,1) lds={LDS_CHAIN}'

def ws_srd(a):
    a(f"""
    s_mov_b32 s48, s{P(15)}
    s_mov_b32 s49, s{P(15)+1}
    s_mov_b32 s50, 0x7fffffff
    s_mov_b32 s51, 0x00020000
    """)

def k3_kmvm():
    a = Asm(); name = 'k3_kmvm_kernel'
    kernel_header(a, name); prologue(a)
    a(f"""
    s_cmp_ge_u32 s2, 256
    s_cbranch_scc1 L_k3_end
    s_lshr_b32 s3, s2, 7                ; 0: K, 1: V
    s_and_b32 s4, s2, 127
    s_lshr_b32 s5, s4, 5
    s_lshl_b32 s5, s5, 7
    s_and_b32 s6, s4, 31
    s_lshl_b32 s6, s6, 7
    s_add_u32 s48, s{P(15)}, {WS_MEM}
    s_addc_u32 s49, s{P(15)+1}, 0
    s_cmp_eq_u32 s3, 0
    s_cselect_b32 s52, s{P(3)}, s{P(4)}
    s_cselect_b32 s53, s{P(3)+1}, s{P(4)+1}
    s_mov_b32 s13, {WS_VM}
    s_cselect_b32 s12, {WS_KM}, s13
    s_add_u32 s56, s{P(15)}, s12
    s_addc_u32 s57, s{P(15)+1}, 0
    s_mov_b32 s50, 0x7fffffff
    s_mov_b32 s51, 0x00020000
    s_mov_b32 s54, 0x7fffffff
    s_mov_b32 s55, 0x00020000
    s_mov_b32 s58, 0x7fffffff
    s_mov_b32 s59, 0x00020000
    s_mov_b32 s7, 896
    s_mov_b32 s8, 7
    s_mov_b32 s9, 8192
    """)
    emit_gemm(a, 128, 128, 48, 52, 56, 's7', 's9', 's9', 's8', 's5', 's6')
    a('L_k3_end:'); a('s_endpgm')
    return a, name, 160, f'grid=(256,1,1) block=(256,1,1) lds={gemm_lds_bytes(128,128)}'

def k4_xattn():
    a = Asm(); name = 'k4_xattn_kernel'
    kernel_header(a, name); prologue(a)
    a('s_cmp_ge_u32 s2, 256'); a('s_cbranch_scc1 L_k4_end')
    ws_srd(a); emit_xattn(a)
    a('L_k4_end:'); a('s_endpgm')
    return a, name, 168, f'grid=(256,1,1) block=(256,1,1) lds={4*48*RSV}'

def k5_flash():
    a = Asm(); name = 'k5_flash_kernel'
    kernel_header(a, name); prologue(a)
    a('s_cmp_ge_u32 s2, 256'); a('s_cbranch_scc1 L_k5_end')
    ws_srd(a); emit_flash(a)
    a('L_k5_end:'); a('s_endpgm')
    return a, name, 320, f'grid=(256,1,1) block=(256,1,1) lds={2*KVBUF}'

def k6_out():
    a = Asm(); name = 'k6_out_kernel'
    kernel_header(a, name); prologue(a)
    a(f"""
    s_cmp_ge_u32 s2, 224
    s_cbranch_scc1 L_k6_end
    s_mul_hi_u32 s3, s2, 0x124924a      ; /224
    s_mul_i32 s4, s3, 224
    s_sub_u32 s4, s2, s4
    s_mul_hi_u32 s5, s4, 0x24924925     ; /7
    s_mul_i32 s6, s5, 7
    s_sub_u32 s6, s4, s6
    s_lshl_b32 s10, s5, 6
    s_lshl_b32 s11, s6, 6
    s_cmp_eq_u32 s3, 0
    s_mov_b32 s13, {WS_CTX}
    s_cselect_b32 s12, {WS_OX}, s13
    s_cselect_b32 s52, s{P(5)}, s{P(12)}
    s_cselect_b32 s53, s{P(5)+1}, s{P(12)+1}
    s_cselect_b32 s14, 0, 896
    s_add_u32 s48, s{P(15)}, s12
    s_addc_u32 s49, s{P(15)+1}, 0
    s_add_u32 s56, s{P(13)}, s14
    s_addc_u32 s57, s{P(13)+1}, 0
    s_mov_b32 s50, 0x7fffffff
    s_mov_b32 s51, 0x00020000
    s_mov_b32 s54, 0x7fffffff
    s_mov_b32 s55, 0x00020000
    s_mov_b32 s58, 0x7fffffff
    s_mov_b32 s59, 0x00020000
    s_mov_b32 s7, 8192
    s_mov_b32 s9, 896
    s_mov_b32 s13, 1792
    s_mov_b32 s8, 64
    """)
    emit_gemm(a, 64, 64, 48, 52, 56, 's7', 's9', 's13', 's8', 's10', 's11')
    a('L_k6_end:'); a('s_endpgm')
    return a, name, 160, f'grid=(224,1,1) block=(256,1,1) lds={gemm_lds_bytes(64,64)}'

NWK = 212
def sync_arrive(a, idx):
    l = a.label('arr')
    a(f"""
    s_waitcnt vmcnt(0)
    s_barrier
    v_cmp_eq_u32 vcc, 0, v0
    s_and_saveexec_b64 s[80:81], vcc
    s_cbranch_execz {l}
    buffer_wbl2 sc1
    s_waitcnt vmcnt(0)
    v_mov_b32 v1, {idx*4}
    v_mov_b32 v2, 1
    buffer_atomic_add v2, v1, s[84:87], 0 offen
    s_waitcnt vmcnt(0)
    {l}:
    s_mov_b64 exec, s[80:81]
    """)
def sync_wait(a, idx, n):
    l = a.label('wt')
    a(f"""
    v_mov_b32 v1, {idx*4}
    {l}:
    buffer_load_dword v2, v1, s[84:87], 0 offen sc1
    s_waitcnt vmcnt(0)
    v_cmp_gt_u32 vcc, {n}, v2
    s_cbranch_vccnz {l}
    buffer_inv sc1
    s_waitcnt vmcnt(0)
    s_barrier
    """)

def k2_main():
    a = Asm(); name = 'k2_main_kernel'
    kernel_header(a, name); prologue(a)
    a(f"""
    s_cmp_ge_u32 s2, 256
    s_cbranch_scc1 L_k2_end2
    s_cmp_ge_u32 s2, 44
    s_cbranch_scc1 L_k2_worker
    """)
    emit_chain(a, 0, 63)
    a('s_branch L_k2_end')
    a('L_k2_worker:')
    a(f"""
    s_mov_b32 s84, s{P(14)}
    s_mov_b32 s85, s{P(14)+1}
    s_mov_b32 s86, 256
    s_mov_b32 s87, 0x00020000
    s_sub_u32 s82, s2, 44
    s_mov_b32 s83, s82
    L_k2_g:
    s_cmp_ge_u32 s83, 2560
    s_cbranch_scc1 L_k2_gdone
    s_lshr_b32 s3, s83, 9
    s_and_b32 s4, s83, 511
    s_lshr_b32 s5, s4, 5
    s_lshl_b32 s5, s5, 7
    s_and_b32 s6, s4, 31
    s_lshl_b32 s6, s6, 7
    s_mov_b32 s48, s{P(8)}
    s_mov_b32 s49, s{P(8)+1}
    s_mov_b32 s52, s{P(10)}
    s_mov_b32 s53, s{P(10)+1}
    s_mov_b32 s56, s46
    s_mov_b32 s57, s47
    s_mov_b32 s7, 2048
    s_mov_b32 s8, 16
    """)
    for g_,(pa,pb,off,lda,kt) in enumerate([(8,10,WS_BK,2048,16),(8,11,WS_BV,2048,16),(7,9,WS_BQ,896,7),(0,2,WS_QX,896,7),(0,4,WS_VX,896,7)]):
        nxt = a.label('sel')
        a(f's_cmp_lg_u32 s3, {g_}')
        a(f's_cbranch_scc1 {nxt}')
        a(f"""
        s_mov_b32 s48, s{P(pa)}
        s_mov_b32 s49, s{P(pa)+1}
        s_mov_b32 s52, s{P(pb)}
        s_mov_b32 s53, s{P(pb)+1}
        s_add_u32 s56, s{P(15)}, {off}
        s_addc_u32 s57, s{P(15)+1}, 0
        s_mov_b32 s7, {lda}
        s_mov_b32 s8, {kt}
        """)
        a(f'{nxt}:')
    a("""
    s_mov_b32 s50, 0x7fffffff
    s_mov_b32 s51, 0x00020000
    s_mov_b32 s54, 0x7fffffff
    s_mov_b32 s55, 0x00020000
    s_mov_b32 s58, 0x7fffffff
    s_mov_b32 s59, 0x00020000
    s_mov_b32 s9, 8192
    """)
    emit_gemm(a, 128, 128, 48, 52, 56, 's7', 's9', 's9', 's8', 's5', 's6')
    a(f"""
    s_barrier
    s_add_u32 s83, s83, {NWK}
    s_branch L_k2_g
    L_k2_gdone:
    """)
    sync_arrive(a, 0)
    sync_wait(a, 0, NWK)
    ws_srd(a)
    a('s_mov_b32 s83, s82')
    emit_flash(a, 's83')
    a(f"""
    s_cmp_lt_u32 s82, {NWK-44}
    s_cbranch_scc1 L_k2_f2
    s_barrier
    s_sub_u32 s83, {NWK-1+NWK}, s82     ; 212 + (211 - w)
    """)
    emit_flash(a, 's83')
    a('L_k2_f2:')
    sync_arrive(a, 1)
    sync_wait(a, 1, NWK)
    a(f"""
    s_mov_b32 s83, s82
    L_k2_o:
    s_cmp_ge_u32 s83, 224
    s_cbranch_scc1 L_k2_end
    s_mul_hi_u32 s5, s83, 0x24924925
    s_mul_i32 s6, s5, 7
    s_sub_u32 s6, s83, s6
    s_lshl_b32 s10, s5, 6
    s_lshl_b32 s11, s6, 6
    s_add_u32 s48, s{P(15)}, {WS_CTX}
    s_addc_u32 s49, s{P(15)+1}, 0
    s_mov_b32 s52, s{P(12)}
    s_mov_b32 s53, s{P(12)+1}
    s_add_u32 s56, s{P(13)}, 896
    s_addc_u32 s57, s{P(13)+1}, 0
    s_mov_b32 s50, 0x7fffffff
    s_mov_b32 s51, 0x00020000
    s_mov_b32 s54, 0x7fffffff
    s_mov_b32 s55, 0x00020000
    s_mov_b32 s58, 0x7fffffff
    s_mov_b32 s59, 0x00020000
    s_mov_b32 s7, 8192
    s_mov_b32 s9, 896
    s_mov_b32 s13, 1792
    s_mov_b32 s8, 64
    """)
    emit_gemm(a, 64, 64, 48, 52, 56, 's7', 's9', 's13', 's8', 's10', 's11')
    a(f"""
    s_barrier
    s_add_u32 s83, s83, {NWK}
    s_branch L_k2_o
    """)
    a('L_k2_end:')
    a('''
    L_k2_end2:
    ''')
    a('s_endpgm')
    return a, name, 512, f'grid=(256,1,1) block=(256,1,1) lds={LDS_CHAIN}'

def build(kernels):
    hdr = ''
    body = '.amdgcn_target "amdgcn-amd-amdhsa--gfx950"\n.text\n'
    tail = '.section .rodata,"a"\n.p2align 6\n'
    for (a, name, vg, launch) in kernels:
        hdr += f'; @launch kernel={name} {launch}\n'
        body += a.text()
        tail += kernel_desc(name, vg, accum=(256 if vg > 256 else None))
    return hdr + body + tail

if __name__ == '__main__':
    open(sys.argv[1], 'w').write(build([k1_prep(), k2_main(), k3_kmvm(), k4_xattn(), k6_out()]))
```
